```python
import torch

def _softmax(x, axis=-1):
    return torch.softmax(x, dim=axis)
def _gelu(x):
    return torch.nn.functional.gelu(x, approximate="tanh")
def _silu(x):
    return torch.nn.functional.silu(x)
def _sigmoid(x):
    return torch.sigmoid(x)
def _layernorm(x, axis=-1, eps=1e-5):
    m = x.mean(dim=axis, keepdim=True)
    v = x.var(dim=axis, keepdim=True, unbiased=False)
    return (x - m) / torch.sqrt(v + eps)
def _scatter_add(tgt, idx, src, axis=0):
    return tgt.clone().index_add_(axis, idx, src)
def _segment_sum(src, seg, n):
    out = torch.zeros((n,) + src.shape[1:], dtype=src.dtype)
    return out.index_add_(0, seg, src)
def _pad(x, pw):
    flat = tuple(v for pair in reversed(pw) for v in pair)
    return torch.nn.functional.pad(x, flat)

kernel_name = 'gated_mix__gqa_block_cached__glu_gated_glu__decode'

def setup_inputs():

    _w = (lambda a: (lambda t: t.to(torch.bfloat16) if t.is_floating_point() else t)(torch.as_tensor(a)))
    def _A_setup():
        B, Sq, D = 2, 1, 512
        Hq, Hkv, Sk, Dh = 32, 8, 16384, 128
        assert Hq % Hkv == 0, (Hq, Hkv)
        return {
            "x": _w((lambda *s: torch.randn(*s, dtype=torch.bfloat16) * 0.05)(B, Sq, D)),
            "k_cache": _w((lambda *s: torch.randn(*s, dtype=torch.bfloat16) * 6.4)(B, Hkv, Sk, Dh)),
            "v_cache": _w((lambda *s: torch.randn(*s, dtype=torch.bfloat16) * 1.6)(B, Hkv, Sk, Dh)),
            "wq": _w((lambda *s: torch.randn(*s, dtype=torch.bfloat16) * 6.4)(D, Hq * Dh) * (D ** -0.5)),
            "wo": _w((lambda *s: torch.randn(*s, dtype=torch.bfloat16) * 1.6)(Hq * Dh, D) * ((Hq * Dh) ** -0.5)),
        }
    _A_in = _A_setup()

    def _B_setup():
        B, S, D, F = 2, 1, 512, 1792
        return {
            "x": _w((lambda *s: torch.randn(*s, dtype=torch.bfloat16) * 0.05)(B, S, D)),
            "w_gate": _w((lambda *s: torch.randn(*s, dtype=torch.bfloat16) * 1.6)(D, F)),
            "w_up": _w((lambda *s: torch.randn(*s, dtype=torch.bfloat16) * 0.05)(D, F)),
            "w_down": _w((lambda *s: torch.randn(*s, dtype=torch.bfloat16) * 0.05)(F, D)),
        }
    _B_in = _B_setup()

    return {
        "A_x": _A_in["x"],
        "A_k_cache": _A_in["k_cache"],
        "A_v_cache": _A_in["v_cache"],
        "A_wq": _A_in["wq"],
        "A_wo": _A_in["wo"],
        "B_x": _B_in["x"],
        "B_w_gate": _B_in["w_gate"],
        "B_w_up": _B_in["w_up"],
        "B_w_down": _B_in["w_down"],
        "gate_w": _w((lambda *s: torch.randn(*s, dtype=torch.bfloat16) * 0.05)(512) * 16.0),
    }

def reference(A_x, A_k_cache, A_v_cache, A_wq, A_wo, B_x, B_w_gate, B_w_up, B_w_down, gate_w):
    def _A_ref(x, k_cache, v_cache, wq, wo):
        B, Sq, D = x.shape
        Hq, Dh = 32, 128
        Hkv = k_cache.shape[1]
        rep = Hq // Hkv
        q = (lambda x, *d: x.permute(*d))((x @ wq).reshape(B, Sq, Hq, Dh), 0, 2, 1, 3)
        k = (lambda x, n, axis: torch.repeat_interleave(x, n, dim=axis))(k_cache, rep, axis=1)
        v = (lambda x, n, axis: torch.repeat_interleave(x, n, dim=axis))(v_cache, rep, axis=1)
        scores = torch.einsum("bhqd,bhkd->bhqk", q, k) * (Dh ** -0.5)
        p = _softmax(scores, axis=-1)
        o = torch.einsum("bhqk,bhkd->bhqd", p, v)
        return (lambda x, *d: x.permute(*d))(o, 0, 2, 1, 3).reshape(B, Sq, Hq * Dh) @ wo

    def _B_ref(x, w_gate, w_up, w_down):
        g = torch.einsum("bsd,df->bsf", x, w_gate)
        u = torch.einsum("bsd,df->bsf", x, w_up)
        h = _sigmoid(g) * u
        return torch.einsum("bsf,fd->bsd", h, w_down)

    x = A_x
    g = _sigmoid((x * gate_w).sum(-1, keepdims=True))
    a = _A_ref(x, A_k_cache, A_v_cache, A_wq, A_wo)
    b = _B_ref(x, B_w_gate, B_w_up, B_w_down)
    return g * a + (1 - g) * b
```

```python
import re

TRANS = ("v_exp_f32", "v_log_f32", "v_rcp_f32", "v_rsq_f32", "v_sqrt_f32", "v_sin_f32", "v_cos_f32")
_REG = re.compile(r"^(v|s|a)(\d+)$")
_RNG = re.compile(r"^(v|s|a)\[(\d+):(\d+)\]$")


def regs_of(tok):
    tok = tok.strip()
    neg = tok.lstrip("-")
    if neg.startswith("abs(") and neg.endswith(")"):
        neg = neg[4:-1]
    if neg.startswith("|") and neg.endswith("|"):
        neg = neg[1:-1]
    m = _REG.match(neg)
    if m:
        return {(m.group(1), int(m.group(2)))}
    m = _RNG.match(neg)
    if m:
        return {(m.group(1), i) for i in range(int(m.group(2)), int(m.group(3)) + 1)}
    if neg == "vcc":
        return {("s", "vcc")}
    if neg == "exec":
        return {("s", "exec")}
    return set()


class Ins:
    def __init__(self, text):
        self.text = text
        self.label = None
        t = text.split(";")[0].strip()
        self.op = ""
        self.ops = []
        if t.endswith(":"):
            self.label = t[:-1]
            self.kind = "label"
            return
        if t == "" or t.startswith("."):
            self.kind = "dir"
            return
        parts = t.split(None, 1)
        self.op = parts[0]
        rest = parts[1] if len(parts) > 1 else ""
        ops, depth, cur = [], 0, ""
        for ch in rest:
            if ch == "[":
                depth += 1
            if ch == "]":
                depth -= 1
            if ch == "," and depth == 0:
                ops.append(cur.strip())
                cur = ""
            else:
                cur += ch
        if cur.strip():
            ops.append(cur.strip())
        self.mods = ""
        if ops:
            last = ops[-1].split(None, 1)
            ops[-1] = last[0]
            self.mods = last[1] if len(last) > 1 else ""
        self.ops = ops
        op = self.op
        R = [regs_of(o) for o in ops]
        self.w = set()
        self.r = set()
        self.dpp = "_dpp" in op
        self.trans = op.replace("_e32", "").replace("_e64", "") in TRANS
        self.mfma = op.startswith("v_mfma")
        self.passes = 0
        self.srcc = set()
        self.ab = set()
        if op.startswith("v_"):
            self.kind = "mfma" if self.mfma else "valu"
            if self.mfma:
                self.w = R[0]
                self.ab = R[1] | R[2]
                self.srcc = R[3]
                self.r = self.ab | self.srcc
                self.passes = 8 if "32x32" in op else 4
            elif op.startswith("v_permlane"):
                self.w = R[0] | R[1]
                self.r = R[0] | R[1]
            elif op.startswith("v_nop"):
                pass
            else:
                self.w = R[0]
                for x in R[1:]:
                    self.r |= x
                if op.startswith(("v_fmac", "v_dot2c", "v_writelane")) or self.dpp:
                    self.r |= R[0]
                if op.startswith("v_cndmask") and len(ops) == 3:
                    self.r |= {("s", "vcc")}
        elif op.startswith(("buffer_load", "global_load")):
            self.kind = "vmem"
            self.w = R[0]
            for x in R[1:]:
                self.r |= x
        elif op.startswith(("buffer_store", "global_store", "global_atomic", "buffer_atomic")):
            self.kind = "vmem"
            for x in R:
                self.r |= x
            if op.startswith("global_atomic") and "sc0" in self.mods:
                self.w = R[0]
            self.wide = ("x4" in op) or ("x3" in op)
            if op.startswith("global_store"):
                self.data = R[1]
            elif op.startswith("buffer_store"):
                self.data = R[0]
            else:
                self.data = set()
        elif op.startswith("ds_"):
            self.kind = "ds"
            if op.startswith(("ds_read", "ds_bpermute", "ds_permute", "ds_swizzle")) or "_rtn" in op:
                self.w = R[0]
                for x in R[1:]:
                    self.r |= x
            else:
                for x in R:
                    self.r |= x
        elif op.startswith("s_"):
            self.kind = "salu"
            if op.startswith(("s_cmp", "s_bitcmp", "s_cbranch", "s_branch", "s_waitcnt", "s_nop", "s_barrier", "s_sleep", "s_endpgm", "s_setprio")):
                for x in R:
                    self.r |= x
            elif R:
                self.w = R[0]
                for x in R[1:]:
                    self.r |= x
        else:
            raise ValueError("unknown instruction: " + text)

    def states(self):
        if self.kind in ("label", "dir"):
            return 0
        if self.op == "s_nop":
            return int(self.ops[0], 0) + 1
        return 1


def vg(s):
    return {x for x in s if x[0] in ("v", "a")}


def sg(s):
    return {x for x in s if x[0] == "s"}


def need(p, c):
    n = 0
    if p.kind == "valu":
        pw = vg(p.w)
        if c.kind == "valu":
            if c.dpp and pw & vg(c.r):
                n = max(n, 2)
            if c.op.startswith(("v_readlane", "v_readfirstlane")) and pw & vg(c.r):
                n = max(n, 1)
            if c.op.startswith("v_permlane") and pw & vg(c.r):
                n = max(n, 2)
            if p.trans and pw & vg(c.r):
                n = max(n, 1)
        if c.kind == "mfma" and pw & vg(c.r):
            n = max(n, 2)
        ps = sg(p.w)
        if ps:
            if c.kind in ("valu", "mfma") and ps & sg(c.r):
                n = max(n, 4 if c.op.startswith(("v_readlane", "v_writelane")) else 2)
            if c.kind == "vmem" and ps & sg(c.r):
                n = max(n, 5)
            if c.kind == "salu" and (ps & sg(c.r) or (("s", "vcc") in ps and "vcc" in c.op)):
                n = max(n, 1)
    if p.kind == "mfma":
        big = {4: 8, 8: 12}[p.passes]
        ovl = {4: 6, 8: 10}[p.passes]
        war = {4: 3, 8: 7}[p.passes]
        if c.kind == "mfma":
            if p.w & c.ab:
                n = max(n, big)
            if p.w & c.srcc and not (p.w == c.srcc and p.passes == c.passes):
                n = max(n, ovl)
            if p.w & c.w and not (p.w == c.srcc):
                n = max(n, big)
        elif c.kind in ("valu", "vmem", "ds"):
            if p.w & (vg(c.r) | vg(c.w)):
                n = max(n, big)
            if c.kind == "valu" and p.srcc & vg(c.w):
                n = max(n, war)
    if p.kind == "vmem" and getattr(p, "wide", False):
        if c.kind in ("valu", "mfma") and p.data & vg(c.w):
            n = max(n, 2)
        elif c.kind in ("vmem", "ds") and p.data & vg(c.w):
            n = max(n, 1)
    return n


class Asm:
    def __init__(self):
        self.L = []

    def __call__(self, text):
        for line in text.split("\n"):
            line = line.strip()
            if line:
                self.L.append(Ins(line))

    def pad(self, maxd=14):
        total = 0
        L = self.L

        def maps():
            lab = {x.label: i for i, x in enumerate(L) if x.kind == "label"}
            srcs = {}
            for i, x in enumerate(L):
                if x.kind == "salu" and x.op.startswith(("s_cbranch", "s_branch")):
                    srcs.setdefault(lab[x.ops[0]], []).append(i)
            return srcs

        srcs = maps()
        i = 0
        while i < len(L):
            c = L[i]
            if c.kind in ("label", "dir"):
                i += 1
                continue
            worst = 0
            stack = [(i - 1, 0)]
            seen = set()
            while stack:
                k, d = stack.pop()
                while k >= 0 and d < maxd:
                    if (k, d) in seen:
                        break
                    seen.add((k, d))
                    p = L[k]
                    if p.kind == "label":
                        for s in srcs.get(k, []):
                            stack.append((s, d))
                        kk = k - 1
                        while kk >= 0 and L[kk].kind == "dir":
                            kk -= 1
                        if kk >= 0 and L[kk].kind == "salu" and L[kk].op in ("s_branch", "s_endpgm"):
                            break
                        k -= 1
                        continue
                    if p.kind == "dir":
                        k -= 1
                        continue
                    n = need(p, c)
                    if n > d:
                        worst = max(worst, n - d)
                    d += p.states()
                    k -= 1
            if worst:
                L.insert(i, Ins(f"s_nop {worst-1}"))
                total += 1
                srcs = maps()
                i += 1
            i += 1
        return total

    def text(self):
        out = []
        for x in self.L:
            out.append(x.text if x.kind in ("label", "dir") else "    " + x.text)
        return "\n".join(out) + "\n"
```

```python
import sys
from asmlib import Asm

KN = "gated_mix__gqa_block_cached__glu_gated_glu__decode_kernel"
HEADER = open("gated_mix__gqa_block_cached__glu_gated_glu__decode.s.ref").read().split("; Override launch")[0] \
    if __name__ != "nohdr" else ""

IN2 = 0
IN1 = 0x120000
QG = 0x1A0000
STAT = 0x1A8000
EP = 0x1AA000
STAMPS = 0x200000
TAGC = 0x9E3779B9
L_Q = 0
L_CS = 1024
L_CG = 1028
L_CO = 1032
L_TR = 1036
L_M = 1088
L_L = 1152
L_G = 1280
L_O = 4096
LDS_BYTES = 4096 + 8192
FULL = "row_mask:0xf bank_mask:0xf"


def gen(D=5, B=40, NS=44, trig=100, str2=4096, stamps=False, budget=260, early=False, hs="sc1", hl="sc1", ntw="nt", qsleep=2):
    a = Asm()
    nst = [0]

    def stamp(idx):
        if stamps:
            a(f"s_memrealtime s[{70+2*idx}:{71+2*idx}]")

    def stamp_out():
        if stamps:
            a("s_waitcnt lgkmcnt(0)")
            a("s_mov_b64 exec, -1")
            for k in range(9):
                a(f"v_writelane_b32 v3, s{70+2*k}, {k}")
            a("s_lshl_b32 s26, s2, 3")
            a("s_add_u32 s26, s26, s3")
            a("s_lshl_b32 s26, s26, 6")
            a(f"s_add_u32 s26, s26, {STAMPS}")
            a("v_lshlrev_b32 v1, 2, v0")
            a("v_add_u32 v1, s26, v1")
            a("s_mov_b64 exec, 0xffff")
            a("global_store_dword v1, v3, s[60:61]")

    uid = [0]

    def lds_spin(addr, val, vt, va, sleep=1):
        uid[0] += 1
        n = uid[0]
        a(f"L_sp{n}:")
        a(f"ds_read_b32 {vt}, {va} offset:{addr}")
        a("s_waitcnt lgkmcnt(0)")
        a(f"v_readfirstlane_b32 s26, {vt}")
        a(f"s_cmp_eq_u32 s26, {val}")
        a(f"s_cbranch_scc1 L_spd{n}")
        a(f"s_sleep {sleep}")
        a("s_sub_u32 s29, s29, 1")
        a(f"s_cbranch_scc0 L_sp{n}")
        a("s_branch L_abort")
        a(f"L_spd{n}:")

    a(f"{KN}:")
    a("s_cmp_ge_u32 s2, 256")
    a("s_cbranch_scc1 L_end")
    if stamps:
        for k in range(9):
            a(f"s_mov_b32 s{70+2*k}, 0")
    stamp(0)
    a("s_load_dwordx16 s[36:51], s[0:1], 0")
    a("s_load_dwordx8 s[52:59], s[0:1], 64")
    a("s_load_dwordx2 s[60:61], s[0:1], 96")
    a("v_lshrrev_b32 v1, 6, v0")
    a("v_and_b32 v0, 63, v0")
    a("v_readfirstlane_b32 s3, v1")
    a("s_and_b32 s4, s2, 7")
    a("s_lshr_b32 s5, s2, 3")
    a("s_lshr_b32 s6, s5, 4")
    a("s_and_b32 s7, s5, 15")
    a("s_mov_b32 s29, 0x40000")
    a("s_mov_b32 s11, 0x20000")
    a("s_mov_b32 s15, 0x20000")
    a("s_cmp_ge_u32 s3, 4")
    a("s_cbranch_scc1 L_helper")

    VQ, VO, VS, VD, VT, VP, VMA, VMB, VMX, VL, VF, RING = 4, 8, 16, 32, 64, 68, 72, 73, 74, 75, 76, 80
    assert RING + NS * 4 <= 256
    a("s_lshl_b32 s26, s6, 3")
    a("s_add_u32 s26, s26, s4")
    a("s_lshl_b32 s26, s26, 22")
    a("s_lshl_b32 s27, s7, 18")
    a("s_add_u32 s26, s26, s27")
    a("s_lshl_b32 s27, s3, 10")
    a("s_add_u32 s26, s26, s27")
    a("v_lshrrev_b32 v2, 4, v0")
    a("v_lshlrev_b32 v2, 6, v2")
    a("v_bfe_u32 v3, v0, 2, 2")
    a("v_lshl_add_u32 v2, v3, 8, v2")
    a("v_and_b32 v3, 3, v0")
    a("v_lshl_add_u32 v1, v3, 4, v2")
    a("v_add_u32 v1, s26, v1")
    a("v_lshl_add_u32 v2, v0, 4, s26")
    a("s_mov_b32 s10, 0x4000000")
    a("s_mov_b32 s14, 0x4000000")
    a("s_mov_b32 s24, 0")
    a("s_movk_i32 s25, 0x1000")
    a("s_waitcnt lgkmcnt(0)")
    a("s_mov_b32 s8, s38")
    a("s_mov_b32 s9, s39")
    a("s_mov_b32 s12, s40")
    a("s_mov_b32 s13, s41")

    def slot(n):
        return RING + (n % NS) * 4

    def issue(n):
        if n >= D:
            a(f"s_waitcnt vmcnt({D-1})")
        if n == 64:
            a("s_mov_b32 s24, 0")
        r = slot(n)
        if n < 64:
            a(f"buffer_load_dwordx4 v[{r}:{r+3}], v1, s[8:11], s24 offen nt")
        else:
            a(f"buffer_load_dwordx4 v[{r}:{r+3}], v2, s[12:15], s24 offen nt")
        if n != 63 and n != 127:
            a("s_add_u32 s24, s24, s25")

    def setup_rest():
        a("s_mov_b32 s64, 0x22222222")
        a("s_mov_b32 s65, 0x22222222")
        a("s_mov_b32 s66, 0x44444444")
        a("s_mov_b32 s67, 0x44444444")
        a("s_mov_b32 s68, 0x88888888")
        a("s_mov_b32 s69, 0x88888888")
        a("s_mov_b32 s88, 0x3db504f3")
        a("s_mov_b32 s89, 0x3fb8aa3b")
        a("s_mov_b32 s90, 0xffff0000")
        a("v_mov_b32 v64, 0xffff")
        a("v_mov_b32 v65, s90")
        a(f"v_cndmask_b32 v{VMA}, v64, v65, s[64:65]")
        a("s_or_b64 s[26:27], s[66:67], s[68:69]")
        a(f"v_cndmask_b32 v{VMA}, v{VMA}, 0, s[26:27]")
        a(f"v_cndmask_b32 v{VMB}, 0, v64, s[66:67]")
        a(f"v_cndmask_b32 v{VMB}, v{VMB}, v65, s[68:69]")
        for i in range(8):
            a(f"v_mov_b32 v{VO+i}, 0")
        a(f"v_mov_b32 v{VMX}, 0xff800000")
        a(f"v_mov_b32 v{VL}, 0")

    for n in range(B):
        issue(n)
        if n == D - 1:
            setup_rest()
    stamp(1)
    a("s_barrier")
    a("v_lshlrev_b32 v3, 4, v0")
    a(f"ds_read_b128 v[{VQ}:{VQ+3}], v3 offset:{L_Q}")
    a("s_waitcnt lgkmcnt(0)")
    stamp(2)

    items = []

    def kb(beta):
        def f():
            if beta < 16:
                d = VD + (beta & 1) * 16
                for m in range(4):
                    r = slot(4 * beta + m)
                    a(f"v_mfma_f32_16x16x32_bf16 v[{d+4*m}:{d+4*m+3}], v[{r}:{r+3}], v[{VQ}:{VQ+3}], 0")
            if beta > 0:
                p = beta - 1
                d = VD + (p & 1) * 16
                for c in range(4):
                    for m in range(4):
                        qp = f"quad_perm:[{c},{c},{c},{c}] {FULL}"
                        if c == 0:
                            a(f"v_mov_b32_dpp v{VT+m}, v{d+4*m} {qp}")
                        else:
                            a(f"v_add_f32_dpp v{VT+m}, v{d+4*m+c}, v{VT+m} {qp}")
                s = VS + p
                a(f"v_cndmask_b32 v{s}, v{VT}, v{VT+1}, s[64:65]")
                a(f"v_cndmask_b32 v{s}, v{s}, v{VT+2}, s[66:67]")
                a(f"v_cndmask_b32 v{s}, v{s}, v{VT+3}, s[68:69]")
                if p & 1:
                    s0, s1 = s - 1, s
                    a(f"v_cvt_pk_bf16_f32 v{VT}, v{s0}, v{s1}")
                    a(f"v_lshlrev_b32 v{s0}, 16, v{VT}")
                    a(f"v_and_b32 v{s1}, s90, v{VT}")
                    a(f"v_mul_f32 v{s0}, s88, v{s0}")
                    a(f"v_mul_f32 v{s1}, s88, v{s1}")
                    a(f"v_cvt_pk_bf16_f32 v{VT}, v{s0}, v{s1}")
                    a(f"v_lshlrev_b32 v{s0}, 16, v{VT}")
                    a(f"v_and_b32 v{s1}, s90, v{VT}")
                    a(f"v_max3_f32 v{VMX}, v{VMX}, v{s0}, v{s1}")
        return f

    for beta in range(17):
        need = min(4 * beta + 3, 63)
        items.append((need, need, 64 + 19 * 4 + (36 if beta % 2 == 0 else 0), kb(beta)))

    def allred(v, op, t):
        a(f"{op}_dpp v{v}, v{v}, v{v} quad_perm:[1,0,3,2] {FULL}")
        a(f"{op}_dpp v{v}, v{v}, v{v} quad_perm:[2,3,0,1] {FULL}")
        a(f"v_mov_b32 v{t}, v{v}")
        a(f"v_permlane16_swap_b32 v{v}, v{t}")
        a(f"{op} v{v}, v{v}, v{t}")
        a(f"v_mov_b32 v{t}, v{v}")
        a(f"v_permlane32_swap_b32 v{v}, v{t}")
        a(f"{op} v{v}, v{v}, v{t}")

    def fin():
        allred(VMX, "v_max_f32", VT)
        a(f"v_mul_f32 v{VMX}, s89, v{VMX}")
        stamp(3)
    items.append((63, 63, 80, fin))

    def expc(i0):
        def f():
            for i in range(i0, i0 + 4):
                a(f"v_fma_f32 v{VS+i}, v{VS+i}, s89, -v{VMX}")
            for i in range(i0, i0 + 4):
                a(f"v_exp_f32 v{VS+i}, v{VS+i}")
            for i in range(i0, i0 + 4):
                a(f"v_add_f32 v{VL}, v{VL}, v{VS+i}")
            for i in range(i0, i0 + 4):
                a(f"v_cvt_pk_bf16_f32 v{VS+i}, v{VS+i}, v{VS+i}")
        return f
    for i0 in range(0, 16, 4):
        items.append((63, 63, 90, expc(i0)))

    def statout():
        allred(VL, "v_add_f32", VT)
        a("v_lshlrev_b32 v3, 2, v0")
        a("s_lshl_b32 s26, s3, 2")
        a("v_add_u32 v3, s26, v3")
        a("s_mov_b64 exec, 0x1111")
        a(f"ds_write_b32 v3, v{VMX} offset:{L_M}")
        a(f"ds_write_b32 v3, v{VL} offset:{L_L}")
        a("s_mov_b64 exec, 1")
        a(f"v_mov_b32 v{VT}, 1")
        a("v_mov_b32 v3, 0")
        a("s_waitcnt lgkmcnt(0)")
        a(f"ds_add_u32 v3, v{VT} offset:{L_CS}")
        a("s_mov_b64 exec, -1")
    items.append((63, 63, 150, statout))

    def pbuild(n):
        p = VP + (n & 1) * 2
        m = n & 3
        qp = f"quad_perm:[{m},{m},{m},{m}] {FULL}"
        a(f"v_and_b32_dpp v{p}, v{VS+(n>>2)}, v{VMA} {qp}")
        a(f"v_and_b32_dpp v{p+1}, v{VS+(n>>2)}, v{VMB} {qp}")
    items.append((63, 63, 8, lambda: pbuild(0)))

    def pv(n):
        def f():
            p = VP + (n & 1) * 2
            r = slot(64 + n)
            a(f"v_mfma_f32_16x16x16_bf16 v[{VO}:{VO+3}], v[{p}:{p+1}], v[{r}:{r+1}], v[{VO}:{VO+3}]")
            a(f"v_mfma_f32_16x16x16_bf16 v[{VO+4}:{VO+7}], v[{p}:{p+1}], v[{r+2}:{r+3}], v[{VO+4}:{VO+7}]")
            if n < 63:
                pbuild(n + 1)
        return f

    def fw():
        a("v_mov_b32 v3, 0")
        lds_spin(L_CS, 4, f"v{VT}", "v3")
        a("v_lshrrev_b32 v3, 4, v0")
        a("v_lshlrev_b32 v3, 4, v3")
        a(f"ds_read_b128 v[{VF}:{VF+3}], v3 offset:{L_M}")
        a(f"v_lshrrev_b32 v{VT}, 1, v0")
        a("s_lshl_b32 s26, s4, 5")
        a(f"v_add_u32 v{VT}, s26, v{VT}")
        a(f"v_lshlrev_b32 v{VT}, 11, v{VT}")
        a(f"v_and_b32 v{VT+1}, 1, v0")
        a(f"v_lshl_add_u32 v1, v{VT+1}, 9, v{VT}")
        a("s_lshr_b32 s26, s7, 3")
        a("s_lshl_b32 s26, s26, 10")
        a("s_bfe_u32 s27, s7, 0x10002")
        a("s_lshl_b32 s27, s27, 7")
        a("s_add_u32 s26, s26, s27")
        a("s_lshl_b32 s27, s6, 6")
        a("s_add_u32 s26, s26, s27")
        a("s_and_b32 s27, s7, 3")
        a("s_lshl_b32 s27, s27, 4")
        a("s_add_u32 s26, s26, s27")
        a(f"s_add_u32 s26, s26, {IN1}")
        a("v_add_u32 v1, s26, v1")
        a("s_lshl_b32 s26, s3, 11")
        a(f"v_lshlrev_b32 v33, 4, v0")
        a("v_add_u32 v32, s26, v33")
        a("v_mov_b32 v34, 0")
        a("v_mov_b32 v35, 1")
        a("s_waitcnt lgkmcnt(0)")
        a(f"v_max3_f32 v{VT}, v{VF}, v{VF+1}, v{VF+2}")
        a(f"v_max_f32 v{VT}, v{VT}, v{VF+3}")
        for i in range(4):
            a(f"v_sub_f32 v{VF+i}, v{VF+i}, v{VT}")
        for i in range(4):
            a(f"v_exp_f32 v{VF+i}, v{VF+i}")

    for n in range(64):
        items.append((64 + n, 64 + n, 48, pv(n)))
        if n == 32:
            items.append((64 + n, 64 + n, 300, fw))

    def trigger():
        uid[0] += 1
        n = uid[0]
        a("s_cmp_lg_u32 s3, 0")
        a(f"s_cbranch_scc1 L_tr{n}")
        a("v_mov_b32 v3, 0")
        a(f"v_mov_b32 v{VT}, 1")
        a(f"ds_write_b32 v3, v{VT} offset:{L_TR}")
        a(f"L_tr{n}:")

    it = 0
    freed = -1
    for n in range(B, 128):
        while freed < n - NS:
            need, fr, cost, f = items[it]
            assert need <= n - 1
            a(f"s_waitcnt vmcnt({n-1-need})") if need > n - 1 - D else None
            f()
            freed = max(freed, fr)
            it += 1
        issue(n)
        if n == trig:
            trigger()
        if n == 64:
            stamp(4)
        acc = 0
        while it < len(items) and items[it][0] <= n - D and acc < budget:
            need, fr, cost, f = items[it]
            f()
            freed = max(freed, fr)
            acc += cost
            it += 1
    stamp(5)
    done = 127 - D
    while it < len(items):
        need, fr, cost, f = items[it]
        if need > done:
            a(f"s_waitcnt vmcnt({127-need})")
            done = need
        f()
        it += 1
    stamp(6)
    a(f"ds_write_b128 v32, v[{VO}:{VO+3}] offset:{L_O}")
    a(f"ds_write_b128 v32, v[{VO+4}:{VO+7}] offset:{L_O+1024}")
    a("s_mov_b64 exec, 1")
    a("s_waitcnt lgkmcnt(0)")
    a(f"ds_add_rtn_u32 v35, v34, v35 offset:{L_CO}")
    a("s_waitcnt lgkmcnt(0)")
    a("v_readfirstlane_b32 s26, v35")
    a("s_mov_b64 exec, -1")
    a("s_cmp_eq_u32 s26, 3")
    a("s_cbranch_scc0 L_sdone")
    X = 80
    for half in range(2):
        for w in range(4):
            r = X + (half * 4 + w) * 4
            a(f"ds_read_b128 v[{r}:{r+3}], v33 offset:{L_O + w*2048 + half*1024}")
    for half in range(2):
        for w in range(4):
            r = X + (half * 4 + w) * 4
            a(f"s_waitcnt lgkmcnt({7 - half*4 - w})")
            fp = VF + (w & 2)
            sel = "op_sel:[0,1,0] op_sel_hi:[1,1,1]" if (w & 1) else "op_sel_hi:[1,0,1]"
            for pr in range(2):
                o = VO + half * 4 + pr * 2
                if w == 0:
                    a(f"v_pk_mul_f32 v[{o}:{o+1}], v[{r+2*pr}:{r+2*pr+1}], v[{fp}:{fp+1}] op_sel_hi:[1,0]")
                else:
                    a(f"v_pk_fma_f32 v[{o}:{o+1}], v[{r+2*pr}:{r+2*pr+1}], v[{fp}:{fp+1}], v[{o}:{o+1}] {sel}")
        a(f"global_store_dwordx4 v1, v[{VO+half*4}:{VO+half*4+3}], s[60:61] offset:{half*256} {hs}")
    stamp(7)
    a("L_sdone:")
    stamp_out()
    a("s_endpgm")

    a("L_helper:")
    a("s_sub_u32 s32, s3, 4")
    a("s_mov_b32 s30, 0x05040100")
    a("s_mov_b32 s31, 0x07060302")
    a("s_mov_b32 s89, 0x3fb8aa3b")
    a("s_mov_b32 s90, 0xffff0000")
    a("s_mov_b32 s92, 0xff00ff00")
    a("s_mov_b32 s93, 0xff00ff00")
    a("s_mov_b32 s19, 0x20000")
    a("s_mov_b32 s23, 0x20000")
    a("s_lshl_b32 s34, s4, 5")
    a("s_add_u32 s34, s34, s5")
    for i in range(4):
        a(f"v_mov_b32 v{4+i}, -1")
    a("v_and_b32 v1, 1, v0")
    a("v_lshlrev_b32 v9, 10, v1")
    a("v_bfe_u32 v1, v0, 1, 1")
    a("v_lshl_add_u32 v9, v1, 6, v9")
    a("v_lshrrev_b32 v1, 4, v0")
    a("v_lshl_add_u32 v9, v1, 4, v9")
    a("v_bfe_u32 v2, v0, 3, 1")
    a("v_lshlrev_b32 v20, 5, v2")
    a("v_lshl_add_u32 v20, v1, 3, v20")
    a("v_and_b32 v21, 7, v0")
    a("v_lshlrev_b32 v21, 2, v21")
    a("v_bfe_u32 v2, v0, 4, 1")
    a("v_lshlrev_b32 v2, 7, v2")
    a("v_lshrrev_b32 v3, 5, v0")
    a("v_lshl_add_u32 v2, v3, 4, v2")
    a("v_and_b32 v3, 15, v0")
    a("v_add_u32 v2, v2, v3")
    a(f"s_mov_b32 s26, {str2}")
    a("v_mul_lo_u32 v15, v2, s26")
    a("s_lshl_b32 s26, s2, 4")
    a(f"s_add_u32 s26, s26, {IN2}")
    a("v_add_u32 v15, s26, v15")
    a("s_cmp_eq_u32 s32, 0")
    a("s_cbranch_scc1 L_h0")
    a("s_cmp_eq_u32 s32, 1")
    a("s_cbranch_scc0 L_hb1")
    a("v_lshlrev_b32 v1, 2, v0")
    a("v_mov_b32 v2, 0")
    a(f"ds_write_b32 v1, v2 offset:{L_CS}")
    a("v_mov_b32 v1, v15")
    a("s_waitcnt lgkmcnt(0)")
    for k in range(4):
        a(f"global_store_dwordx4 v1, v[4:7], s[60:61] {hs}")
        if k < 3:
            a(f"v_add_u32 v1, {32*str2}, v1")
    a("s_and_b32 s26, s2, 1")
    a("s_lshl_b32 s26, s26, 7")
    a("v_mov_b32 v1, s26")
    a("v_mov_b32 v2, 1")
    a("s_mov_b64 exec, 1")
    a("s_waitcnt vmcnt(0)")
    a("global_atomic_add v1, v2, s[58:59] sc1")
    a("s_mov_b64 exec, -1")
    a("s_branch L_hb1")

    a("L_h0:")
    a("s_lshl_b32 s26, s4, 7")
    a(f"s_add_u32 s26, s26, {EP}")
    a("v_mov_b32 v1, s26")
    a("s_lshl_b32 s26, s34, 11")
    a(f"s_add_u32 s26, s26, {IN1}")
    a("v_lshl_add_u32 v2, v0, 4, s26")
    a("s_lshl_b32 s26, s34, 5")
    a(f"s_add_u32 s26, s26, {STAT}")
    a("v_lshl_add_u32 v3, v0, 4, s26")
    a("s_movk_i32 s26, 0x2000")
    a("v_mul_lo_u32 v22, v20, s26")
    a("v_add_u32 v22, v22, v21")
    a("s_lshl_b32 s26, s34, 5")
    a("v_add_u32 v22, s26, v22")
    a("s_mov_b32 s10, 0x400000")
    a("s_waitcnt lgkmcnt(0)")
    a("s_mov_b32 s8, s42")
    a("s_mov_b32 s9, s43")
    XR, WR, BT, DE = 32, 64, 136, 128
    a("s_mov_b32 s24, 0")
    a("s_movk_i32 s25, 0x2000")

    def wq_unit(u):
        for e in range(8):
            a(f"buffer_load_dword v{WR+u*8+e}, v22, s[8:11], s24 offen {ntw}")
            if e < 7:
                a("s_add_u32 s24, s24, s25")
            elif u < 7:
                a(f"s_add_u32 s24, s24, {57*8192}")
    wq_unit(0)
    for u in range(8):
        a(f"global_load_dwordx4 v[{XR+4*u}:{XR+4*u+3}], v9, s[36:37] offset:{u*128}")
    a("global_load_dword v8, v1, s[60:61]")
    a(f"global_store_dwordx4 v2, v[4:7], s[60:61] {hs}")
    a(f"global_store_dwordx4 v2, v[4:7], s[60:61] offset:1024 {hs}")
    a("s_mov_b64 exec, 3")
    a(f"global_store_dwordx4 v3, v[4:7], s[60:61] {hs}")
    a("s_mov_b64 exec, -1")
    for u in range(1, 6):
        wq_unit(u)

    def perm_mfma(wbase, xreg, de, first):
        for i in range(4):
            a(f"v_perm_b32 v{BT+i}, v{wbase+2*i+1}, v{wbase+2*i}, s30")
        for i in range(4):
            a(f"v_perm_b32 v{BT+4+i}, v{wbase+2*i+1}, v{wbase+2*i}, s31")
        c0 = "0" if first else f"v[{de}:{de+3}]"
        c1 = "0" if first else f"v[{de+4}:{de+7}]"
        a(f"v_mfma_f32_16x16x32_bf16 v[{de}:{de+3}], v[{xreg}:{xreg+3}], v[{BT}:{BT+3}], {c0}")
        a(f"v_mfma_f32_16x16x32_bf16 v[{de+4}:{de+7}], v[{xreg}:{xreg+3}], v[{BT+4}:{BT+7}], {c1}")
    issued = 6
    for u in range(8):
        a(f"s_waitcnt vmcnt({(issued - 1 - u) * 8})")
        perm_mfma(WR + u * 8, XR + 4 * u, DE, u == 0)
        if issued < 8:
            wq_unit(issued)
            issued += 1
    stamp(1)
    a("v_bfe_u32 v1, v0, 4, 1")
    a("v_lshlrev_b32 v1, 6, v1")
    a("v_lshl_add_u32 v1, v21, 1, v1")
    a("s_lshl_b32 s26, s34, 7")
    a(f"s_add_u32 s26, s26, {QG}")
    a("v_add_u32 v1, s26, v1")
    a("v_readfirstlane_b32 s28, v8")
    a(f"s_add_u32 s28, s28, {TAGC}")
    for par in range(2):
        for b in range(2):
            a(f"v_add_f32_dpp v{24+par*2+b}, v{DE+par*4+2+b}, v{DE+par*4+b} row_ror:8 {FULL}")
    a("v_cvt_pk_bf16_f32 v24, v24, v26")
    a("v_cvt_pk_bf16_f32 v25, v25, v27")
    a("s_mov_b32 s26, 0xffff0000")
    a("s_mov_b32 s27, 0xffff0000")
    a("v_cndmask_b32 v24, v24, v25, s[26:27]")
    a("v_mov_b32 v25, s28")
    a("s_mov_b64 exec, 0x00ff00ff")
    a(f"global_store_dwordx2 v1, v[24:25], s[60:61] {hs}")
    a("s_mov_b64 exec, -1")
    stamp(2)
    a("v_lshrrev_b32 v2, 4, v0")
    a("v_lshlrev_b32 v2, 1, v2")
    a("v_bfe_u32 v3, v0, 1, 1")
    a("v_add_u32 v2, v2, v3")
    a("v_bfe_u32 v3, v0, 2, 2")
    a("v_lshl_add_u32 v2, v3, 3, v2")
    a("v_lshlrev_b32 v2, 7, v2")
    a("v_and_b32 v3, 1, v0")
    a("v_lshl_add_u32 v2, v3, 5, v2")
    a("s_lshl_b32 s26, s4, 12")
    a("s_lshl_b32 s27, s6, 6")
    a("s_add_u32 s26, s26, s27")
    a(f"s_add_u32 s26, s26, {QG}")
    a("v_add_u32 v2, s26, v2")
    a("L_qpoll:")
    a(f"global_load_dwordx4 v[24:27], v2, s[60:61] {hl}")
    a(f"global_load_dwordx4 v[28:31], v2, s[60:61] offset:16 {hl}")
    a("s_waitcnt vmcnt(0)")
    a("v_xor_b32 v25, s28, v25")
    a("v_xor_b32 v27, s28, v27")
    a("v_xor_b32 v29, s28, v29")
    a("v_xor_b32 v31, s28, v31")
    a("v_or3_b32 v25, v25, v27, v29")
    a("v_or_b32 v25, v25, v31")
    a("v_cmp_ne_u32 vcc, 0, v25")
    a("s_cbranch_vccz L_qdone")
    a(f"s_sleep {qsleep}")
    a("s_sub_u32 s29, s29, 1")
    a("s_cbranch_scc0 L_qpoll")
    a("s_branch L_abort")
    a("L_qdone:")
    a("v_mov_b32 v25, v26")
    a("v_mov_b32 v26, v28")
    a("v_mov_b32 v27, v30")
    a("v_lshlrev_b32 v3, 4, v0")
    a(f"ds_write_b128 v3, v[24:27] offset:{L_Q}")
    stamp(3)
    a("L_hb1:")
    a("s_waitcnt lgkmcnt(0)")
    a("s_barrier")

    a("s_mov_b32 s16, s44")
    a("s_mov_b32 s17, s45")
    a("s_mov_b32 s18, 0x400000")
    a("s_mov_b32 s20, s52")
    a("s_mov_b32 s21, s53")
    a(f"s_mov_b32 s22, {1792*1024}")
    a("s_mov_b32 s8, s48")
    a("s_mov_b32 s9, s49")
    a(f"s_mov_b32 s10, {512*3584}")
    a("s_mov_b32 s12, s50")
    a("s_mov_b32 s13, s51")
    a(f"s_mov_b32 s14, {512*3584}")
    a("s_lshr_b32 s33, s5, 2")
    a("s_lshl_b32 s33, s33, 3")
    a("s_add_u32 s33, s33, s4")
    a("s_lshl_b32 s35, s33, 2")
    a("s_and_b32 s26, s5, 3")
    a("s_add_u32 s35, s35, s26")
    a("s_movk_i32 s26, 3584")
    a("v_mul_lo_u32 v22, v20, s26")
    a("v_add_u32 v22, v22, v21")
    a("s_lshl_b32 s26, s35, 5")
    a("v_add_u32 v22, s26, v22")
    a("v_lshrrev_b32 v1, 4, v0")
    a("v_lshlrev_b32 v23, 12, v1")
    a("v_and_b32 v1, 15, v0")
    a("v_lshl_add_u32 v23, v1, 3, v23")
    a("s_lshl_b32 s26, s32, 8")
    a("v_add_u32 v23, s26, v23")
    a(f"s_mul_i32 s26, s32, {32*str2}")
    a("v_add_u32 v15, s26, v15")
    WG, WU, XG, WD, WO, DG, OD, OO, LR, AO, DO = 64, 80, 96, 104, 120, 144, 160, 176, 192, 224, 228

    def side_loads():
        uid[0] += 1
        n = uid[0]
        a("s_cmp_ge_u32 s33, 28")
        a(f"s_cbranch_scc1 L_nog{n}")
        a(f"s_mul_i32 s24, s32, {128*3584}")
        a("s_movk_i32 s25, 3584")
        a("s_lshl_b32 s26, s32, 8")
        a("v_add_u32 v1, s26, v9")
        for u in range(2):
            a(f"global_load_dwordx4 v[{XG+4*u}:{XG+4*u+3}], v1, s[36:37] offset:{u*128}")
        for u in range(2):
            for e in range(8):
                a(f"buffer_load_dword v{WG+u*8+e}, v22, s[8:11], s24 offen {ntw}")
                a(f"buffer_load_dword v{WU+u*8+e}, v22, s[12:15], s24 offen {ntw}")
                if e < 7:
                    a("s_add_u32 s24, s24, s25")
                elif u == 0:
                    a(f"s_add_u32 s24, s24, {57*3584}")
        a("s_lshl_b32 s24, s35, 14")
        for beta in range(2):
            for e in range(4):
                r = WD + (beta * 4 + e) * 2
                a(f"buffer_load_dwordx2 v[{r}:{r+1}], v23, s[20:23], s24 offen offset:{e*1024+beta*128} {ntw}")
        a(f"L_nog{n}:")
        a("s_lshl_b32 s24, s34, 14")
        for beta in range(2):
            for e in range(4):
                r = WO + (beta * 4 + e) * 2
                a(f"buffer_load_dwordx2 v[{r}:{r+1}], v23, s[16:19], s24 offen offset:{e*1024+beta*128} {ntw}")

    def slab_perm(raw, out):
        for kap in range(4):
            sel = "s30" if kap % 2 == 0 else "s31"
            for beta in range(2):
                for pr in range(2):
                    lo = raw + (beta * 4 + 2 * pr) * 2 + (kap >> 1)
                    hi = raw + (beta * 4 + 2 * pr + 1) * 2 + (kap >> 1)
                    a(f"v_perm_b32 v{out+kap*4+beta*2+pr}, v{hi}, v{lo}, {sel}")

    def slab_mfma(p0, p1, ops):
        a(f"v_cndmask_b32 v{AO}, v{p0}, 0, s[92:93]")
        a(f"v_cndmask_b32 v{AO+1}, v{p1}, 0, s[92:93]")
        a(f"v_cndmask_b32 v{AO+2}, 0, v{p0}, s[92:93]")
        a(f"v_cndmask_b32 v{AO+3}, 0, v{p1}, s[92:93]")
        for kap in range(4):
            a(f"v_mfma_f32_16x16x32_bf16 v[{DO+4*kap}:{DO+4*kap+3}], v[{AO}:{AO+3}], v[{ops+4*kap}:{ops+4*kap+3}], 0")

    def sigmoid(v):
        a(f"v_mul_f32 v{v}, s89, v{v}")
        a(f"v_exp_f32 v{v}, -v{v}")
        a(f"v_add_f32 v{v}, 1.0, v{v}")
        a(f"v_rcp_f32 v{v}, v{v}")

    def side_compute():
        uid[0] += 1
        n = uid[0]
        for i in range(4):
            a(f"v_mov_b32 v{16+i}, 0")
        a("s_cmp_ge_u32 s33, 28")
        a(f"s_cbranch_scc1 L_nog{n}")
        a("s_waitcnt vmcnt(32)")
        perm_mfma(WG, XG, DG, True)
        perm_mfma(WU, XG, DG + 8, True)
        a("s_waitcnt vmcnt(16)")
        perm_mfma(WG + 8, XG + 4, DG, False)
        perm_mfma(WU + 8, XG + 4, DG + 8, False)
        a("s_lshl_b32 s26, s32, 8")
        a("v_lshl_add_u32 v1, v21, 1, s26")
        for mat in range(2):
            for b in range(2):
                for par in range(2):
                    d = DG + mat * 8 + par * 4
                    a(f"v_add_f32_dpp v{24+(mat*2+b)*2+par}, v{d+2+b}, v{d+b} row_ror:8 {FULL}")
        a("s_mov_b64 exec, 0xff")
        for mat in range(2):
            for b in range(2):
                r = 24 + (mat * 2 + b) * 2
                a(f"ds_write_b64 v1, v[{r}:{r+1}] offset:{L_G + mat*128 + b*64}")
        a("s_mov_b64 exec, 1")
        a("v_mov_b32 v2, 1")
        a("v_mov_b32 v3, 0")
        a("s_waitcnt lgkmcnt(0)")
        a(f"ds_add_u32 v3, v2 offset:{L_CG}")
        a("s_mov_b64 exec, -1")
        a("v_mov_b32 v3, 0")
        a("s_waitcnt vmcnt(8)")
        slab_perm(WD, OD)
        a("v_bfe_u32 v1, v0, 2, 1")
        a("v_lshlrev_b32 v1, 6, v1")
        a("v_lshrrev_b32 v2, 4, v0")
        a("v_lshl_add_u32 v1, v2, 4, v1")
        lds_spin(L_CG, 4, "v2", "v3")
        for mat in range(2):
            for w in range(4):
                r = LR + (mat * 4 + w) * 4
                a(f"ds_read_b128 v[{r}:{r+3}], v1 offset:{L_G + w*256 + mat*128}")
        a("s_waitcnt lgkmcnt(0)")
        for mat in range(2):
            r = LR + mat * 16
            for pr in range(2):
                a(f"v_pk_add_f32 v[{r+2*pr}:{r+2*pr+1}], v[{r+2*pr}:{r+2*pr+1}], v[{r+4+2*pr}:{r+5+2*pr}]")
                a(f"v_pk_add_f32 v[{r+8+2*pr}:{r+9+2*pr}], v[{r+8+2*pr}:{r+9+2*pr}], v[{r+12+2*pr}:{r+13+2*pr}]")
            for pr in range(2):
                a(f"v_pk_add_f32 v[{r+2*pr}:{r+2*pr+1}], v[{r+2*pr}:{r+2*pr+1}], v[{r+8+2*pr}:{r+9+2*pr}]")
        G, U = LR, LR + 16

        def rnd4(v):
            a(f"v_cvt_pk_bf16_f32 v24, v{v}, v{v+1}")
            a(f"v_cvt_pk_bf16_f32 v25, v{v+2}, v{v+3}")
            a(f"v_lshlrev_b32 v{v}, 16, v24")
            a(f"v_and_b32 v{v+1}, s90, v24")
            a(f"v_lshlrev_b32 v{v+2}, 16, v25")
            a(f"v_and_b32 v{v+3}, s90, v25")
        rnd4(G)
        rnd4(U)
        for i in range(4):
            a(f"v_mul_f32 v{G+i}, s89, v{G+i}")
        for i in range(4):
            a(f"v_exp_f32 v{G+i}, -v{G+i}")
        for i in range(4):
            a(f"v_add_f32 v{G+i}, 1.0, v{G+i}")
        for i in range(4):
            a(f"v_rcp_f32 v{G+i}, v{G+i}")
        rnd4(G)
        for i in range(4):
            a(f"v_mul_f32 v{G+i}, v{G+i}, v{U+i}")
        a(f"v_cvt_pk_bf16_f32 v24, v{G}, v{G+1}")
        a(f"v_cvt_pk_bf16_f32 v25, v{G+2}, v{G+3}")
        slab_mfma(24, 25, OD)
        for kap in range(4):
            a(f"v_mul_f32 v{16+kap}, v11, v{DO+4*kap}")
        a(f"L_nog{n}:")
        a("s_waitcnt vmcnt(0)")
        slab_perm(WO, OO)

    a("v_lshrrev_b32 v1, 5, v0")
    a("v_lshlrev_b32 v1, 4, v1")
    a("v_and_b32 v2, 15, v0")
    a("v_add_u32 v1, v1, v2")
    a("v_lshlrev_b32 v1, 5, v1")
    a("v_bfe_u32 v2, v0, 4, 1")
    a("v_lshl_add_u32 v2, v2, 10, v1")
    a("global_load_dwordx4 v[32:35], v2, s[36:37]")
    a("global_load_dwordx4 v[36:39], v2, s[36:37] offset:16")
    a("global_load_dwordx4 v[40:43], v1, s[54:55]")
    a("global_load_dwordx4 v[44:47], v1, s[54:55] offset:16")
    a("v_mov_b32 v10, 0")
    a("s_waitcnt vmcnt(0)")
    for i in range(8):
        a(f"v_lshlrev_b32 v48, 16, v{32+i}")
        a(f"v_and_b32 v49, s90, v{32+i}")
        a(f"v_lshlrev_b32 v50, 16, v{40+i}")
        a(f"v_and_b32 v51, s90, v{40+i}")
        a("v_mul_f32 v48, v48, v50")
        a("v_mul_f32 v49, v49, v51")
        a("v_cvt_pk_bf16_f32 v48, v48, v49")
        a("v_and_b32 v49, s90, v48")
        a("v_lshlrev_b32 v48, 16, v48")
        a("v_add_f32 v10, v10, v48")
        a("v_add_f32 v10, v10, v49")
    for rr in (8, 4, 2, 1):
        a(f"v_add_f32_dpp v10, v10, v10 row_ror:{rr} {FULL}")
    a("v_mov_b32 v48, v10")
    a("v_permlane32_swap_b32 v10, v48")
    a("v_add_f32 v10, v10, v48")
    a("v_cvt_pk_bf16_f32 v10, v10, v10")
    a("v_and_b32 v10, s90, v10")
    sigmoid(10)
    a("v_cvt_pk_bf16_f32 v10, v10, v10")
    a("v_and_b32 v10, s90, v10")
    a("v_sub_f32 v11, 1.0, v10")
    a("v_cvt_pk_bf16_f32 v11, v11, v11")
    a("v_and_b32 v11, s90, v11")

    if early:
        side_loads()
        side_compute()

    a("v_mov_b32 v3, 0")
    lds_spin(L_CS, 4, "v2", "v3", sleep=4)
    a("s_cmp_lg_u32 s32, 0")
    a("s_cbranch_scc1 L_nost")
    a("v_and_b32 v1, 3, v0")
    a("v_lshlrev_b32 v2, 4, v1")
    a(f"ds_read_b128 v[24:27], v2 offset:{L_M}")
    a(f"ds_read_b128 v[28:31], v2 offset:{L_L}")
    a("s_lshl_b32 s26, s34, 5")
    a(f"s_add_u32 s26, s26, {STAT}")
    a("v_lshl_add_u32 v1, v1, 3, s26")
    a("s_waitcnt lgkmcnt(0)")
    a("v_max3_f32 v32, v24, v25, v26")
    a("v_max_f32 v32, v32, v27")
    for i in range(4):
        a(f"v_sub_f32 v{24+i}, v{24+i}, v32")
    for i in range(4):
        a(f"v_exp_f32 v{24+i}, v{24+i}")
    a("v_mul_f32 v33, v24, v28")
    for i in range(1, 4):
        a(f"v_fmac_f32 v33, v{24+i}, v{28+i}")
    a("s_mov_b64 exec, 0xf")
    a(f"global_store_dwordx2 v1, v[32:33], s[60:61] {hs}")
    a("s_mov_b64 exec, -1")
    stamp(4)
    a("v_lshlrev_b32 v1, 7, v0")
    a("s_mov_b64 exec, 3")
    a("L_cpoll:")
    a("global_load_dword v2, v1, s[58:59] sc1")
    a("s_waitcnt vmcnt(0)")
    a("v_cmp_ne_u32 vcc, 0x80, v2")
    a("s_cbranch_vccz L_cdone")
    a("s_sleep 8")
    a("s_sub_u32 s29, s29, 1")
    a("s_cbranch_scc0 L_cpoll")
    a("s_branch L_abort")
    a("L_cdone:")
    a("s_mov_b64 exec, -1")
    a("L_nost:")
    a("v_bfe_u32 v1, v0, 2, 1")
    a("v_lshlrev_b32 v1, 4, v1")
    a("v_bfe_u32 v2, v0, 3, 1")
    a("v_lshl_add_u32 v1, v2, 2, v1")
    a("v_and_b32 v2, 3, v0")
    a("v_add_u32 v1, v1, v2")
    a("v_lshlrev_b32 v1, 5, v1")
    a("s_lshl_b32 s26, s4, 10")
    a("s_lshr_b32 s27, s5, 3")
    a("s_lshl_b32 s27, s27, 3")
    a("s_add_u32 s26, s26, s27")
    a(f"s_add_u32 s26, s26, {STAT}")
    a("v_add_u32 v1, s26, v1")
    a("L_stpoll:")
    a(f"global_load_dwordx2 v[24:25], v1, s[60:61] {hl}")
    a(f"global_load_dwordx2 v[26:27], v1, s[60:61] offset:256 {hl}")
    a("s_waitcnt vmcnt(0)")
    a("v_max3_u32 v2, v24, v25, v26")
    a("v_max_u32 v2, v2, v27")
    a("v_cmp_eq_u32 vcc, -1, v2")
    a("s_cbranch_vccz L_stdone")
    a("s_sleep 8")
    a("s_sub_u32 s29, s29, 1")
    a("s_cbranch_scc0 L_stpoll")
    a("s_branch L_abort")
    a("L_stdone:")
    a("v_max_f32 v2, v24, v26")
    for ctl in ("quad_perm:[1,0,3,2]", "quad_perm:[2,3,0,1]", "row_ror:8"):
        a(f"v_max_f32_dpp v2, v2, v2 {ctl} {FULL}")
    a("v_sub_f32 v12, v24, v2")
    a("v_sub_f32 v13, v26, v2")
    a("v_exp_f32 v12, v12")
    a("v_exp_f32 v13, v13")
    a("v_mul_f32 v2, v12, v25")
    a("v_fmac_f32 v2, v13, v27")
    for ctl in ("quad_perm:[1,0,3,2]", "quad_perm:[2,3,0,1]", "row_ror:8"):
        a(f"v_add_f32_dpp v2, v2, v2 {ctl} {FULL}")
    a("v_rcp_f32 v2, v2")
    a("v_mul_f32 v12, v12, v2")
    a("v_mul_f32 v13, v13, v2")
    stamp(5)
    if not early:
        a("v_mov_b32 v3, 0")
        lds_spin(L_TR, 1, "v2", "v3", sleep=2)
        side_loads()
        side_compute()
    a("s_lshl_b32 s26, s34, 11")
    a(f"s_add_u32 s26, s26, {IN1}")
    a("v_lshl_add_u32 v14, v0, 4, s26")
    a(f"s_mul_i32 s26, s2, {str2}")
    a(f"s_add_u32 s26, s26, {IN2}")
    a("v_lshl_add_u32 v8, v0, 4, s26")
    stamp(6)
    a("L_p1:")
    a(f"global_load_dwordx4 v[64:67], v14, s[60:61] {hl}")
    a(f"global_load_dwordx4 v[68:71], v14, s[60:61] offset:1024 {hl}")
    a("s_waitcnt vmcnt(0)")
    a("v_max3_u32 v2, v64, v65, v66")
    a("v_max3_u32 v3, v67, v68, v69")
    a("v_max3_u32 v2, v2, v70, v71")
    a("v_max_u32 v2, v2, v3")
    a("v_cmp_eq_u32 vcc, -1, v2")
    a("s_cbranch_vccz L_p1done")
    a("s_sub_u32 s29, s29, 1")
    a("s_cbranch_scc0 L_p1")
    a("s_branch L_abort")
    a("L_p1done:")
    for pr in range(2):
        a(f"v_pk_mul_f32 v[{64+2*pr}:{65+2*pr}], v[{64+2*pr}:{65+2*pr}], v[12:13] op_sel_hi:[1,0]")
    for pr in range(2):
        a(f"v_pk_fma_f32 v[{64+2*pr}:{65+2*pr}], v[{68+2*pr}:{69+2*pr}], v[12:13], v[{64+2*pr}:{65+2*pr}] op_sel:[0,1,0] op_sel_hi:[1,1,1]")
    for ctl in ("quad_perm:[1,0,3,2]", "quad_perm:[2,3,0,1]", "row_ror:8"):
        for i in range(4):
            a(f"v_add_f32_dpp v{64+i}, v{64+i}, v{64+i} {ctl} {FULL}")
    a("v_cvt_pk_bf16_f32 v24, v64, v65")
    a("v_cvt_pk_bf16_f32 v25, v66, v67")
    slab_mfma(24, 25, OO)
    for kap in range(4):
        a(f"v_fma_f32 v{16+kap}, v10, v{DO+4*kap}, v{16+kap}")
    a(f"global_store_dwordx4 v15, v[16:19], s[60:61] {hs}")
    stamp(7)
    a("s_cmp_lg_u32 s32, 0")
    a("s_cbranch_scc1 L_hdone")
    a("L_p2:")
    for t in range(4):
        a(f"global_load_dwordx4 v[{72+4*t}:{75+4*t}], v8, s[60:61] offset:{t*1024} {hl}")
    a("s_waitcnt vmcnt(0)")
    a("v_max3_u32 v2, v72, v73, v74")
    a("v_max3_u32 v3, v75, v76, v77")
    a("v_max3_u32 v2, v2, v78, v79")
    a("v_max3_u32 v3, v3, v80, v81")
    a("v_max3_u32 v2, v2, v82, v83")
    a("v_max3_u32 v3, v3, v84, v85")
    a("v_max3_u32 v2, v2, v86, v87")
    a("v_max_u32 v2, v2, v3")
    a("v_cmp_eq_u32 vcc, -1, v2")
    a("s_cbranch_vccz L_p2done")
    a("s_sub_u32 s29, s29, 1")
    a("s_cbranch_scc0 L_p2")
    a("s_branch L_abort")
    a("L_p2done:")
    for pr in range(2):
        a(f"v_pk_add_f32 v[{72+2*pr}:{73+2*pr}], v[{72+2*pr}:{73+2*pr}], v[{76+2*pr}:{77+2*pr}]")
        a(f"v_pk_add_f32 v[{80+2*pr}:{81+2*pr}], v[{80+2*pr}:{81+2*pr}], v[{84+2*pr}:{85+2*pr}]")
    for pr in range(2):
        a(f"v_pk_add_f32 v[{72+2*pr}:{73+2*pr}], v[{72+2*pr}:{73+2*pr}], v[{80+2*pr}:{81+2*pr}]")
    for ctl in ("row_ror:8 " + FULL, "row_ror:4 " + FULL, "row_ror:2 " + FULL, "row_ror:1 " + FULL,
                "row_bcast:15 row_mask:0xa bank_mask:0xf", "row_bcast:31 row_mask:0xc bank_mask:0xf"):
        for i in range(4):
            a(f"v_add_f32_dpp v{72+i}, v{72+i}, v{72+i} {ctl}")
    a("v_cvt_pk_bf16_f32 v72, v72, v73")
    a("v_cvt_pk_bf16_f32 v73, v74, v75")
    a("s_lshl_b32 s26, s2, 3")
    a("v_mov_b32 v1, s26")
    a("s_mov_b32 exec_lo, 0")
    a("s_mov_b32 exec_hi, 0x80000000")
    a("global_store_dwordx2 v1, v[72:73], s[56:57]")
    a("s_cmp_ge_u32 s2, 8")
    a("s_cbranch_scc1 L_noep")
    a("s_lshl_b32 s26, s4, 7")
    a(f"s_add_u32 s26, s26, {EP}")
    a("v_mov_b32 v1, s26")
    a("v_mov_b32 v2, s28")
    a("global_store_dword v1, v2, s[60:61] sc1")
    a("L_noep:")
    stamp(8)
    a("L_hdone:")
    stamp_out()
    a("s_endpgm")
    a("L_abort:")
    a("s_mov_b64 exec, 1")
    a("v_mov_b32 v1, 8")
    a("v_mov_b32 v2, 0xdead")
    a("global_store_dword v1, v2, s[58:59]")
    a("L_end:")
    a("s_endpgm")
    nn = a.pad()

    out = HEADER
    out += "; Generated by my own script (work/gen.py); one persistent workgroup per CU:\n"
    out += ";   waves 0-3 stream K then V (paced), waves 4-7 do the projections and the hand-offs.\n"
    out += f"; @launch grid=(256,1,1) block=(512,1,1) lds={LDS_BYTES}\n"
    out += '.amdgcn_target "amdgcn-amd-amdhsa--gfx950"\n.text\n'
    out += f".globl {KN}\n.p2align 8\n.type {KN},@function\n"
    out += a.text()
    out += '.section .rodata,"a"\n.p2align 6\n'
    out += f".amdhsa_kernel {KN}\n"
    out += "  .amdhsa_next_free_vgpr 256\n  .amdhsa_next_free_sgpr 102\n  .amdhsa_accum_offset 256\n"
    out += "  .amdhsa_group_segment_fixed_size 0\n  .amdhsa_kernarg_size 104\n  .amdhsa_user_sgpr_count 2\n"
    out += "  .amdhsa_user_sgpr_kernarg_segment_ptr 1\n  .amdhsa_system_sgpr_workgroup_id_x 1\n.end_amdhsa_kernel\n"
    return out


if __name__ == "__main__":
    kw = eval("dict(" + (sys.argv[2] if len(sys.argv) > 2 else "") + ")")
    open(sys.argv[1], "w").write(gen(**kw))
```

```python
import sys
from asmlib import Asm

KN = "gated_mix__gqa_block_cached__glu_gated_glu__decode_kernel"
HEADER = open("gated_mix__gqa_block_cached__glu_gated_glu__decode.s.ref").read().split("; Override launch")[0]

GSTR = 0x38000
RSG = 0x00000
IN1 = 0x20000
QP = 0x30000
STAT = 0x34000
IN3 = 0x1C0000
EP = 0x1C8000
STAMPS = 0x900000
TAGC = 0x9E3779B9
L_Q = 0
L_CS = 1024
L_CO = 1028
L_TR = 1032
L_HR = 1036
L_FL = 1040
L_GG = 1048
L_M = 1088
L_L = 1152
L_W = 2048
L_GT = 3072
L_O = 4096
LDS_BYTES = 4096 + 8192
FULL = "row_mask:0xf bank_mask:0xf"
XOR3 = ("quad_perm:[1,0,3,2]", "quad_perm:[2,3,0,1]", "row_ror:8")


def gen(D=6, B=40, NS=44, trig1=88, trig=122, budget=260, fbk=48, qdelay=0, qsleep=1, p1sleep=0, stsleep=8, delay3=0,
        atom=False, force_slow=False, warm=True, hfirst=True, D2=None, n2=96, D0=None, n0=0, glulate=False,
        stamps=False, tdbg=False, abl=0, kvfl="nt", ntw="nt", fwat=32, prio=0):
    a = Asm()
    uid = [0]

    def new():
        uid[0] += 1
        return uid[0]

    def tstamp(idx):
        if stamps and tdbg:
            a(f"s_memrealtime s[{70+2*idx}:{71+2*idx}]")

    def stamp(idx):
        if stamps and not (tdbg and 1 <= idx <= 5):
            a(f"s_memrealtime s[{70+2*idx}:{71+2*idx}]")

    def stamp_out():
        if stamps:
            a("s_waitcnt lgkmcnt(0)")
            a("s_mov_b64 exec, -1")
            for k in range(9):
                a(f"v_writelane_b32 v3, s{70+2*k}, {k}")
            a("s_lshl_b32 s26, s2, 3")
            a(f"s_xor_b32 s27, s3, {4 if hfirst else 0}")
            a("s_add_u32 s26, s26, s27")
            a("s_lshl_b32 s26, s26, 6")
            a(f"s_add_u32 s26, s26, {STAMPS}")
            a("v_lshlrev_b32 v1, 2, v0")
            a("v_add_u32 v1, s26, v1")
            a("s_mov_b64 exec, 0xffff")
            a("global_store_dword v1, v3, s[60:61]")

    def lds_spin(addr, val, vt, va, sleep=1, cmp="eq"):
        n = new()
        a(f"L_sp{n}:")
        a(f"ds_read_b32 {vt}, {va} offset:{addr}")
        a("s_waitcnt lgkmcnt(0)")
        a(f"v_readfirstlane_b32 s26, {vt}")
        a(f"s_cmp_{cmp}_u32 s26, {val}")
        a(f"s_cbranch_scc1 L_spd{n}")
        a(f"s_sleep {sleep}")
        a("s_sub_u32 s29, s29, 1")
        a(f"s_cbranch_scc0 L_sp{n}")
        a("s_branch L_abort")
        a(f"L_spd{n}:")

    cold = []

    def pub(emit):
        n = new()
        a("s_cmp_eq_u32 s94, 2")
        a(f"s_cbranch_scc0 L_pubs{n}")
        emit("")
        a(f"L_pubd{n}:")

        def slow():
            a(f"L_pubs{n}:")
            emit("sc1")
            a(f"s_branch L_pubd{n}")
        cold.append(slow)

    def half_exec():
        a("s_mov_b32 exec_lo, 0x00ff00ff")
        a("s_mov_b32 exec_hi, 0x00ff00ff")

    RAW, OPS, RAW2, OPS2, RAW3, OPS3, GA, AO, DO = 64, 80, 96, 112, 128, 144, 160, 224, 228

    a(f"{KN}:")
    a("s_cmp_ge_u32 s2, 256")
    a("s_cbranch_scc1 L_end")
    if stamps:
        for k in range(9):
            a(f"s_mov_b32 s{70+2*k}, 0")
    stamp(0)
    a("s_load_dwordx16 s[36:51], s[0:1], 0")
    a("s_load_dwordx8 s[52:59], s[0:1], 64")
    a("s_load_dwordx2 s[60:61], s[0:1], 96")
    a("v_lshrrev_b32 v1, 6, v0")
    a("v_and_b32 v0, 63, v0")
    a("v_readfirstlane_b32 s3, v1")
    a("s_and_b32 s4, s2, 7")
    a("s_lshr_b32 s5, s2, 3")
    a("s_mov_b32 s11, 0x20000")
    a("s_mov_b32 s15, 0x20000")
    a("v_lshrrev_b32 v2, 4, v0")
    a("s_and_b32 s32, s3, 3")
    a("s_cmp_ge_u32 s3, 4")
    a(f"s_cbranch_scc{1 if hfirst else 0} L_stream")

    if prio:
        a(f"s_setprio {prio}")
    a("v_and_b32 v4, 15, v0")
    a("v_lshlrev_b32 v4, 3, v4")
    a("v_lshl_add_u32 v3, v2, 16, v4")
    a("s_and_b32 s26, s5, 7")
    a("s_lshl_b32 s26, s26, 7")
    a("s_lshl_b32 s27, s4, 10")
    a("s_add_u32 s26, s26, s27")
    a("v_add_u32 v3, s26, v3")
    a("s_lshr_b32 s26, s5, 3")
    a("s_lshl_b32 s26, s26, 2")
    a("s_add_u32 s26, s26, s32")
    a("s_lshl_b32 s24, s26, 18")
    a("s_lshl_b32 s26, s26, 6")
    a("v_bfe_u32 v1, v0, 2, 1")
    a("v_lshlrev_b32 v9, 10, v1")
    a("v_lshl_add_u32 v1, v2, 4, v9")
    a("v_add_u32 v1, s26, v1")
    a(f"v_mov_b32 v5, {EP}")
    a("s_mov_b32 s10, 0x400000")
    a("s_movk_i32 s25, 0x2000")
    a("s_waitcnt lgkmcnt(0)")
    a("s_mov_b32 s8, s42")
    a("s_mov_b32 s9, s43")
    for e in range(8):
        a(f"buffer_load_dwordx2 v[{RAW+2*e}:{RAW+2*e+1}], v3, s[8:11], s24 offen {ntw}")
        if e < 7:
            a("s_add_u32 s24, s24, s25")
    a(f"global_load_dwordx4 v[{AO}:{AO+3}], v1, s[36:37]")
    a("global_load_dword v7, v5, s[60:61]")
    a("s_branch L_helper")

    VQ, VO, VS, VD, VT, VP, VMA, VMB, VMX, VL, VF, RING = 4, 8, 16, 32, 64, 68, 72, 73, 74, 75, 76, 80
    assert RING + NS * 4 <= 256
    a("L_stream:")
    a("s_lshr_b32 s6, s5, 4")
    a("s_and_b32 s7, s5, 15")
    a("s_lshl_b32 s26, s6, 3")
    a("s_add_u32 s26, s26, s4")
    a("s_lshl_b32 s26, s26, 4")
    a("s_add_u32 s26, s26, s7")
    a("s_lshl_b32 s26, s26, 8")
    a("s_add_u32 s26, s26, s32")
    a("s_lshl_b32 s26, s26, 10")
    a("v_lshlrev_b32 v2, 6, v2")
    a("v_bfe_u32 v3, v0, 2, 2")
    a("v_lshl_add_u32 v2, v3, 8, v2")
    a("v_and_b32 v3, 3, v0")
    a("v_lshl_add_u32 v1, v3, 4, v2")
    a("v_add_u32 v1, s26, v1")
    a("s_mov_b32 s10, 0x4000000")
    a("s_mov_b32 s24, 0")
    a("s_movk_i32 s25, 0x1000")
    a("s_waitcnt lgkmcnt(0)")
    a("s_mov_b32 s8, s38")
    a("s_mov_b32 s9, s39")

    def slot(n):
        return RING + (n % NS) * 4

    def dep(n):
        if D0 is not None and n < n0:
            return D0
        return D2 if (D2 is not None and n >= n2) else D

    known = [-1]

    def issue(n):
        if n - dep(n) > known[0]:
            a(f"s_waitcnt vmcnt({dep(n)-1})")
            known[0] = n - dep(n)
        if n == 64:
            a("s_mov_b32 s24, 0")
        r = slot(n)
        if n < 64:
            a(f"buffer_load_dwordx4 v[{r}:{r+3}], v1, s[8:11], s24 offen {kvfl}")
        else:
            a(f"buffer_load_dwordx4 v[{r}:{r+3}], v2, s[12:15], s24 offen {kvfl}")
        if n != 63 and n != 127:
            a("s_add_u32 s24, s24, s25")

    def setup_rest():
        a("v_lshl_add_u32 v2, v0, 4, s26")
        a("s_mov_b32 s12, s40")
        a("s_mov_b32 s13, s41")
        a("s_mov_b32 s14, 0x4000000")
        a("s_mov_b32 s29, 0x40000")
        a("s_mov_b32 s64, 0x22222222")
        a("s_mov_b32 s65, 0x22222222")
        a("s_mov_b32 s66, 0x44444444")
        a("s_mov_b32 s67, 0x44444444")
        a("s_mov_b32 s68, 0x88888888")
        a("s_mov_b32 s69, 0x88888888")
        a("s_mov_b32 s88, 0x3db504f3")
        a("s_mov_b32 s89, 0x3fb8aa3b")
        a("s_mov_b32 s90, 0xffff0000")
        a("s_mov_b32 s91, 0xfffff000")
        a("v_mov_b32 v64, 0xffff")
        a("v_mov_b32 v65, s90")
        a(f"v_cndmask_b32 v{VMA}, v64, v65, s[64:65]")
        a("s_or_b64 s[26:27], s[66:67], s[68:69]")
        a(f"v_cndmask_b32 v{VMA}, v{VMA}, 0, s[26:27]")
        a(f"v_cndmask_b32 v{VMB}, 0, v64, s[66:67]")
        a(f"v_cndmask_b32 v{VMB}, v{VMB}, v65, s[68:69]")
        for i in range(8):
            a(f"v_mov_b32 v{VO+i}, 0")
        a(f"v_mov_b32 v{VMX}, 0xff800000")
        a(f"v_mov_b32 v{VL}, 0")

    for n in range(B):
        issue(n)
        if n == dep(0) - 1:
            setup_rest()
    stamp(1)
    a("s_barrier")
    a("v_lshlrev_b32 v3, 4, v0")
    a(f"ds_read_b128 v[{VQ}:{VQ+3}], v3 offset:{L_Q}")
    a("s_waitcnt lgkmcnt(0)")
    stamp(2)

    items = []

    def kb(beta):
        def f():
            if beta < 16:
                d = VD + (beta & 1) * 16
                for m in range(4):
                    r = slot(4 * beta + m)
                    a(f"v_mfma_f32_16x16x32_bf16 v[{d+4*m}:{d+4*m+3}], v[{r}:{r+3}], v[{VQ}:{VQ+3}], 0")
            if beta > 0:
                p = beta - 1
                d = VD + (p & 1) * 16
                for c in range(4):
                    for m in range(4):
                        qp = f"quad_perm:[{c},{c},{c},{c}] {FULL}"
                        if c == 0:
                            a(f"v_mov_b32_dpp v{VT+m}, v{d+4*m} {qp}")
                        else:
                            a(f"v_add_f32_dpp v{VT+m}, v{d+4*m+c}, v{VT+m} {qp}")
                s = VS + p
                a(f"v_cndmask_b32 v{s}, v{VT}, v{VT+1}, s[64:65]")
                a(f"v_cndmask_b32 v{s}, v{s}, v{VT+2}, s[66:67]")
                a(f"v_cndmask_b32 v{s}, v{s}, v{VT+3}, s[68:69]")
                if p & 1:
                    s0, s1 = s - 1, s
                    a(f"v_cvt_pk_bf16_f32 v{VT}, v{s0}, v{s1}")
                    a(f"v_lshlrev_b32 v{s0}, 16, v{VT}")
                    a(f"v_and_b32 v{s1}, s90, v{VT}")
                    a(f"v_mul_f32 v{s0}, s88, v{s0}")
                    a(f"v_mul_f32 v{s1}, s88, v{s1}")
                    a(f"v_cvt_pk_bf16_f32 v{VT}, v{s0}, v{s1}")
                    a(f"v_lshlrev_b32 v{s0}, 16, v{VT}")
                    a(f"v_and_b32 v{s1}, s90, v{VT}")
                    a(f"v_max3_f32 v{VMX}, v{VMX}, v{s0}, v{s1}")
        return f

    for beta in range(17):
        items.append((min(4 * beta + 3, 63), 64 + 19 * 4 + (36 if beta % 2 == 0 else 0), kb(beta)))

    def allred(v, op, t):
        a(f"{op}_dpp v{v}, v{v}, v{v} quad_perm:[1,0,3,2] {FULL}")
        a(f"{op}_dpp v{v}, v{v}, v{v} quad_perm:[2,3,0,1] {FULL}")
        a(f"v_mov_b32 v{t}, v{v}")
        a(f"v_permlane16_swap_b32 v{v}, v{t}")
        a(f"{op} v{v}, v{v}, v{t}")
        a(f"v_mov_b32 v{t}, v{v}")
        a(f"v_permlane32_swap_b32 v{v}, v{t}")
        a(f"{op} v{v}, v{v}, v{t}")

    def fin():
        allred(VMX, "v_max_f32", VT)
        a(f"v_mul_f32 v{VMX}, s89, v{VMX}")
        stamp(3)
    items.append((63, 80, fin))

    def expc(i0):
        def f():
            for i in range(i0, i0 + 4):
                a(f"v_fma_f32 v{VS+i}, v{VS+i}, s89, -v{VMX}")
            for i in range(i0, i0 + 4):
                a(f"v_exp_f32 v{VS+i}, v{VS+i}")
            for i in range(i0, i0 + 4):
                a(f"v_add_f32 v{VL}, v{VL}, v{VS+i}")
            for i in range(i0, i0 + 4):
                a(f"v_cvt_pk_bf16_f32 v{VS+i}, v{VS+i}, v{VS+i}")
        return f
    for i0 in range(0, 16, 4):
        items.append((63, 90, expc(i0)))

    def statout():
        allred(VL, "v_add_f32", VT)
        a("v_lshlrev_b32 v3, 2, v0")
        a("s_lshl_b32 s26, s32, 2")
        a("v_add_u32 v3, s26, v3")
        a("s_mov_b64 exec, 0x1111")
        a(f"ds_write_b32 v3, v{VMX} offset:{L_M}")
        a(f"ds_write_b32 v3, v{VL} offset:{L_L}")
        a("s_mov_b64 exec, 1")
        a(f"v_mov_b32 v{VT}, 1")
        a("v_mov_b32 v3, 0")
        a(f"ds_add_u32 v3, v{VT} offset:{L_CS}")
        a("s_mov_b64 exec, -1")
    items.append((63, 100, statout))

    def pbuild(n):
        p = VP + (n & 1) * 2
        m = n & 3
        qp = f"quad_perm:[{m},{m},{m},{m}] {FULL}"
        a(f"v_and_b32_dpp v{p}, v{VS+(n>>2)}, v{VMA} {qp}")
        a(f"v_and_b32_dpp v{p+1}, v{VS+(n>>2)}, v{VMB} {qp}")
    items.append((63, 8, lambda: pbuild(0)))

    def pv(n):
        def f():
            p = VP + (n & 1) * 2
            r = slot(64 + n)
            a(f"v_mfma_f32_16x16x16_bf16 v[{VO}:{VO+3}], v[{p}:{p+1}], v[{r}:{r+1}], v[{VO}:{VO+3}]")
            a(f"v_mfma_f32_16x16x16_bf16 v[{VO+4}:{VO+7}], v[{p}:{p+1}], v[{r+2}:{r+3}], v[{VO+4}:{VO+7}]")
            if n < 63:
                pbuild(n + 1)
        return f

    def fw_addr():
        a(f"v_lshrrev_b32 v{VT}, 1, v0")
        a(f"v_lshlrev_b32 v{VT}, 11, v{VT}")
        a(f"v_and_b32 v{VT+1}, 1, v0")
        a(f"v_lshl_add_u32 v1, v{VT+1}, 9, v{VT}")
        a("s_lshr_b32 s26, s7, 3")
        a("s_lshl_b32 s26, s26, 10")
        a("s_bfe_u32 s27, s7, 0x10002")
        a("s_lshl_b32 s27, s27, 7")
        a("s_add_u32 s26, s26, s27")
        a("s_lshl_b32 s27, s6, 6")
        a("s_add_u32 s26, s26, s27")
        a("s_and_b32 s27, s7, 3")
        a("s_lshl_b32 s27, s27, 4")
        a("s_add_u32 s26, s26, s27")
        a(f"s_mul_i32 s27, s4, {GSTR}")
        a("s_add_u32 s26, s26, s27")
        a(f"s_add_u32 s26, s26, {IN1}")
        a("v_add_u32 v1, s26, v1")
        a("s_lshl_b32 s26, s32, 11")
        a("v_lshlrev_b32 v33, 4, v0")
        a("v_add_u32 v32, s26, v33")
        a("v_mov_b32 v34, 0")
        a("v_mov_b32 v35, 1")

    def fw():
        lds_spin(L_CS, 4, f"v{VT}", "v34")
        if not glulate:
            lds_spin(L_GG, 1, f"v{VT}", "v34")
        a(f"ds_read_b64 v[36:37], v34 offset:{L_FL}")
        a("v_lshrrev_b32 v3, 4, v0")
        a("v_lshlrev_b32 v3, 4, v3")
        a(f"ds_read_b128 v[{VF}:{VF+3}], v3 offset:{L_M}")
        a("s_waitcnt lgkmcnt(0)")
        a("v_readfirstlane_b32 s94, v36")
        a(f"v_max3_f32 v{VT}, v{VF}, v{VF+1}, v{VF+2}")
        a(f"v_max_f32 v{VT}, v{VT}, v{VF+3}")
        for i in range(4):
            a(f"v_sub_f32 v{VF+i}, v{VF+i}, v{VT}")
        for i in range(4):
            a(f"v_exp_f32 v{VF+i}, v{VF+i}")

    for n in range(64):
        items.append((64 + n, 48, pv(n)))
        if n == fwat - 2:
            items.append((64 + n, 100, fw_addr))
        if n == fwat:
            items.append((64 + n, 300, fw))

    def trigger(val):
        n = new()
        a("s_cmp_lg_u32 s32, 0")
        a(f"s_cbranch_scc1 L_tr{n}")
        a("v_mov_b32 v3, 0")
        a(f"v_mov_b32 v{VT}, {val}")
        a(f"ds_write_b32 v3, v{VT} offset:{L_TR}")
        a(f"L_tr{n}:")

    it = 0
    freed = -1
    for n in range(B, 128):
        while freed < n - NS:
            need, cost, f = items[it]
            assert need <= n - 1
            if need > known[0]:
                a(f"s_waitcnt vmcnt({n-1-need})")
                known[0] = need
            f()
            freed = max(freed, need)
            it += 1
        issue(n)
        if n == trig1:
            trigger(1)
        if n == trig:
            trigger(2)
        if n == 64:
            stamp(4)
        acc = 0
        while it < len(items) and items[it][0] <= known[0] and acc < budget:
            need, cost, f = items[it]
            f()
            freed = max(freed, need)
            acc += cost
            it += 1
    stamp(5)
    while it < len(items):
        need, cost, f = items[it]
        if need > known[0]:
            a(f"s_waitcnt vmcnt({127-need})")
            known[0] = need
        f()
        it += 1
    stamp(6)
    a(f"ds_write_b128 v32, v[{VO}:{VO+3}] offset:{L_O}")
    a(f"ds_write_b128 v32, v[{VO+4}:{VO+7}] offset:{L_O+1024}")
    a("s_mov_b64 exec, 1")
    a(f"ds_add_rtn_u32 v35, v34, v35 offset:{L_CO}")
    a("s_waitcnt lgkmcnt(0)")
    a("v_readfirstlane_b32 s26, v35")
    tstamp(1)
    a("s_mov_b64 exec, -1")
    a("s_cmp_eq_u32 s26, 3")
    a("s_cbranch_scc0 L_sdone")
    X = 80
    for half in range(2):
        for w in range(4):
            r = X + (half * 4 + w) * 4
            a(f"ds_read_b128 v[{r}:{r+3}], v33 offset:{L_O + w*2048 + half*1024}")
    for half in range(2):
        for w in range(4):
            r = X + (half * 4 + w) * 4
            a(f"s_waitcnt lgkmcnt({0 if (stamps and tdbg) else 7 - half*4 - w})")
            fp = VF + (w & 2)
            sel = "op_sel:[0,1,0] op_sel_hi:[1,1,1]" if (w & 1) else "op_sel_hi:[1,0,1]"
            for pr in range(2):
                o = VO + half * 4 + pr * 2
                if w == 0:
                    a(f"v_pk_mul_f32 v[{o}:{o+1}], v[{r+2*pr}:{r+2*pr+1}], v[{fp}:{fp+1}] op_sel_hi:[1,0]")
                else:
                    a(f"v_pk_fma_f32 v[{o}:{o+1}], v[{r+2*pr}:{r+2*pr+1}], v[{fp}:{fp+1}], v[{o}:{o+1}] {sel}")
        for i in range(4):
            a(f"v_and_or_b32 v{VO+half*4+i}, v{VO+half*4+i}, s91, v37")
        pub(lambda fl, half=half: a(f"global_store_dwordx4 v1, v[{VO+half*4}:{VO+half*4+3}], s[60:61] offset:{half*256} {fl}"))
    stamp(7)
    a("L_sdone:")
    stamp_out()
    a("s_endpgm")

    def poll(loads, check, sleep=0):
        n = new()
        a(f"L_po{n}:")
        loads()
        check()
        a(f"s_cbranch_vccz L_pod{n}")
        if sleep:
            a(f"s_sleep {sleep}")
        a("s_sub_u32 s29, s29, 1")
        a(f"s_cbranch_scc0 L_po{n}")
        a("s_branch L_abort")
        a(f"L_pod{n}:")

    def gl(regs_offs, areg):
        for r, off in regs_offs:
            a(f"global_load_dwordx4 v[{r}:{r+3}], v{areg}, s[60:61] offset:{off} sc1")

    def tagcheck(regs, mask, tag, wait="vmcnt(0)"):
        a(f"s_waitcnt {wait}")
        tmp = [1, 2, 3, 4, 5, 28, 29, 30]
        t = []
        first = True
        for c0 in range(0, len(regs), 16):
            t = []
            for i in range(c0, min(c0 + 16, len(regs)), 2):
                d = tmp[(i - c0) // 2]
                a(f"v_bitop3_b32 v{d}, v{regs[i]}, v{regs[i+1]}, v{tag} bitop3:0x7e")
                t.append(d)
            if not first:
                t.append(31)
            while len(t) > 1:
                if len(t) >= 3:
                    a(f"v_or3_b32 v{t[0]}, v{t[0]}, v{t[1]}, v{t[2]}")
                    t = t[3:] + [t[0]]
                else:
                    a(f"v_or_b32 v{t[0]}, v{t[0]}, v{t[1]}")
                    t = [t[0]]
            if c0 + 16 < len(regs):
                a(f"v_mov_b32 v31, v{t[0]}")
            first = False
        a(f"v_and_b32 v{t[0]}, {mask}, v{t[0]}")
        a(f"v_cmp_ne_u32 vcc, 0, v{t[0]}")

    def strip(regs):
        for r in regs:
            a(f"v_and_b32 v{r}, s91, v{r}")

    def pkadd(d, s):
        a(f"v_pk_add_f32 v[{d}:{d+1}], v[{d}:{d+1}], v[{s}:{s+1}]")

    def sum4(x):
        for pr in (0, 2):
            pkadd(x + pr, x + 4 + pr)
            pkadd(x + 8 + pr, x + 12 + pr)
        for pr in (0, 2):
            pkadd(x + pr, x + 8 + pr)

    def treduce(x):
        a(f"v_permlane32_swap_b32 v{x}, v{x+1}")
        a(f"v_permlane32_swap_b32 v{x+2}, v{x+3}")
        a(f"v_add_f32 v{x}, v{x}, v{x+1}")
        a(f"v_add_f32 v{x+2}, v{x+2}, v{x+3}")
        a(f"v_permlane16_swap_b32 v{x}, v{x+2}")
        a(f"v_add_f32 v{x}, v{x}, v{x+2}")
        a(f"v_add_f32_dpp v{x}, v{x}, v{x} row_ror:8 {FULL}")

    def slab_perm(raw, out):
        for kap in range(4):
            sel = "s30" if kap % 2 == 0 else "s31"
            for pr in range(4):
                lo = raw + 4 * pr + (kap >> 1)
                a(f"v_perm_b32 v{out+kap*4+pr}, v{lo+2}, v{lo}, {sel}")

    def mfma4(ops):
        for kap in range(4):
            a(f"v_mfma_f32_16x16x32_bf16 v[{DO+4*kap}:{DO+4*kap+3}], v[{AO}:{AO+3}], v[{ops+4*kap}:{ops+4*kap+3}], 0")

    def slab_mfma(p0, p1, ops):
        a(f"v_cndmask_b32 v{AO}, v{p0}, 0, s[92:93]")
        a(f"v_cndmask_b32 v{AO+1}, v{p1}, 0, s[92:93]")
        a(f"v_cndmask_b32 v{AO+2}, 0, v{p0}, s[92:93]")
        a(f"v_cndmask_b32 v{AO+3}, 0, v{p1}, s[92:93]")
        mfma4(ops)

    def glu_loads():
        n = new()
        a(f"s_mul_i32 s24, s5, {16*3584}")
        a("s_movk_i32 s25, 3584")
        a("s_cmp_eq_u32 s32, 3")
        a(f"s_cbranch_scc0 L_fullg{n}")
        half_exec()
        a(f"L_fullg{n}:")
        for e in range(4):
            for beta in range(2):
                r = RAW2 + (beta * 4 + e) * 2
                a(f"buffer_load_dwordx2 v[{r}:{r+1}], v20, s[{16-4*beta}:{19-4*beta}], s24 offen {ntw}")
            if e < 3:
                a("s_add_u32 s24, s24, s25")
        a("s_mov_b64 exec, -1")

    a("L_helper:")
    a("v_lshl_add_u32 v1, v2, 3, v9")
    a("s_lshl_b32 s26, s5, 5")
    a("v_add_u32 v1, s26, v1")
    a("global_load_dwordx2 v[26:27], v1, s[36:37]")
    a(f"v_mul_u32_u24 v20, {4*3584}, v2")
    a("v_add_u32 v20, v20, v4")
    a("s_mul_i32 s26, s4, 448")
    a("s_lshl_b32 s27, s32, 7")
    a("s_add_u32 s26, s26, s27")
    a("v_add_u32 v20, s26, v20")
    a("s_mov_b32 s16, s48")
    a("s_mov_b32 s17, s49")
    a(f"s_mov_b32 s18, {512*3584}")
    a("s_mov_b32 s19, 0x20000")
    a("s_mov_b32 s12, s50")
    a("s_mov_b32 s13, s51")
    a(f"s_mov_b32 s14, {512*3584}")
    glu_loads()
    later = 9
    a("s_lshr_b32 s6, s5, 4")
    a(f"s_mul_i32 s34, s4, {GSTR}")
    a("s_mov_b32 s29, 0x40000")
    a("s_mov_b32 s30, 0x05040100")
    a("s_mov_b32 s31, 0x07060302")
    a("s_mov_b32 s89, 0x3fb8aa3b")
    a("s_mov_b32 s90, 0xffff0000")
    a("s_mov_b32 s91, 0xfffff000")
    a("s_mov_b32 s92, 0xff00ff00")
    a("s_mov_b32 s93, 0xff00ff00")
    a("s_mov_b32 s23, 0x20000")
    a("v_lshl_add_u32 v23, v2, 12, v4")
    a("s_lshl_b32 s27, s32, 8")
    a("v_add_u32 v23, s27, v23")
    a("v_mov_b32 v8, 0")
    a("s_lshl_b32 s26, s32, 9")
    a("v_lshlrev_b32 v9, 4, v0")
    a("v_add_u32 v5, s26, v9")
    a(f"s_waitcnt vmcnt({later+2})")
    slab_perm(RAW, OPS)
    a(f"s_waitcnt vmcnt({later})")
    mfma4(OPS)
    a(f"v_add_u32 v7, {TAGC}, v7")
    a("v_and_b32 v6, 0xfff, v7")
    a("s_mov_b32 exec_hi, 0")
    for kap in range(4):
        a(f"v_and_or_b32 v{16+kap}, v{DO+4*kap}, s91, v6")
    a(f"ds_write_b128 v5, v[16:19] offset:{L_O}")
    a("s_mov_b64 exec, -1")
    stamp(1)
    a("s_cmp_eq_u32 s32, 0")
    a("s_cbranch_scc0 L_hb1")
    a("v_lshlrev_b32 v1, 2, v0")
    a(f"ds_write_b32 v1, v8 offset:{L_CS}")
    a("s_getreg_b32 s33, hwreg(HW_REG_XCC_ID, 0, 4)")
    a("s_add_u32 s33, s33, 1")
    a("v_add_u32 v25, s33, v7")
    a("v_and_b32 v24, 0xfff, v25")
    a("v_and_b32 v9, 0x1ff, v9")
    a("v_bfe_u32 v2, v0, 4, 1")
    a("v_lshlrev_b32 v21, 8, v2")
    a("v_and_b32 v2, 1, v0")
    a("v_lshl_add_u32 v21, v2, 7, v21")
    a("v_bfe_u32 v2, v0, 1, 3")
    a("v_lshl_add_u32 v21, v2, 4, v21")
    a("s_lshl_b32 s26, s5, 9")
    a("s_add_u32 s26, s26, s34")
    a(f"s_add_u32 s26, s26, {QP}")
    a("v_add_u32 v21, s26, v21")
    a("v_bfe_u32 v2, v0, 2, 2")
    a("v_lshlrev_b32 v14, 10, v2")
    a("v_lshrrev_b32 v2, 5, v0")
    a("v_lshl_add_u32 v14, v2, 9, v14")
    a("v_bfe_u32 v2, v0, 4, 1")
    a("v_lshl_add_u32 v14, v2, 6, v14")
    a("v_and_b32 v2, 3, v0")
    a("v_lshl_add_u32 v14, v2, 4, v14")
    a("s_lshl_b32 s26, s6, 8")
    a("s_add_u32 s26, s26, s34")
    a(f"s_add_u32 s26, s26, {QP+4096}")
    a("v_add_u32 v14, s26, v14")
    a("v_add_u32 v15, 0x2000, v14")
    regs = list(range(GA, GA + 16))
    poll(lambda: [a(f"ds_read_b128 v[{GA+4*w}:{GA+4*w+3}], v9 offset:{L_O+w*512}") for w in range(4)],
         lambda: tagcheck(regs, "0xfff", 6, wait="lgkmcnt(0)"))
    strip(regs)
    sum4(GA)
    a("s_mov_b32 exec_hi, 0")
    for i in range(4):
        a(f"v_and_or_b32 v{16+i}, v{GA+i}, s91, v24")
    a("global_store_dwordx4 v21, v[16:19], s[60:61]")
    a("s_mov_b64 exec, -1")
    stamp(2)
    regs = list(range(GA, GA + 32))

    def qloads():
        for half in range(2):
            for kq in range(4):
                r = GA + (half * 4 + kq) * 4
                a(f"global_load_dwordx4 v[{r}:{r+3}], v{14 + (kq >> 1)}, s[60:61] offset:{(kq & 1)*4096 - 4096 + half*128} sc1")
    if qdelay:
        a(f"s_sleep {qdelay}")
    a(f"s_movk_i32 s27, {0 if force_slow else fbk}")
    a("s_mov_b32 s94, 2")
    a("L_qf:")
    a("s_sub_u32 s27, s27, 1")
    a("s_cbranch_scc1 L_qslow")
    qloads()
    tagcheck(regs, "0xfff", 25)
    a("s_cbranch_vccz L_qok")
    a(f"s_sleep {qsleep}")
    a("s_branch L_qf")

    def qslow():
        a("L_qslow:")
        a("s_mov_b32 s94, 1")
        a("s_mov_b32 exec_hi, 0")
        for i in range(4):
            a(f"v_and_or_b32 v{16+i}, v{16+i}, s91, v6")
        a("global_store_dwordx4 v21, v[16:19], s[60:61] sc1")
        a("s_mov_b64 exec, -1")

        def either():
            a("s_waitcnt vmcnt(0)")
            a("v_mov_b32 v3, 0")
            for r in range(GA, GA + 32):
                a(f"v_sub_u32 v1, v{r}, v6")
                a("v_and_b32 v1, 0xfff, v1")
                a("v_subrev_u32 v2, s33, v1")
                a("v_mul_i32_i24 v1, v1, v2")
                a("v_or_b32 v3, v3, v1")
            a("v_cmp_ne_u32 vcc, 0, v3")
        poll(qloads, either, sleep=4)
        a("s_branch L_qok")
    cold.append(qslow)
    a("L_qok:")
    strip(regs)
    sum4(GA)
    sum4(GA + 16)
    a(f"v_cvt_pk_bf16_f32 v28, v{GA}, v{GA+1}")
    a(f"v_cvt_pk_bf16_f32 v29, v{GA+2}, v{GA+3}")
    a(f"v_cvt_pk_bf16_f32 v30, v{GA+16}, v{GA+17}")
    a(f"v_cvt_pk_bf16_f32 v31, v{GA+18}, v{GA+19}")
    a("v_lshlrev_b32 v3, 4, v0")
    a(f"ds_write_b128 v3, v[28:31] offset:{L_Q}")
    a("v_mov_b32 v24, s94")
    a("v_add_u32 v25, 16, v7")
    a("v_and_b32 v25, 0xfff, v25")
    a(f"ds_write_b64 v8, v[24:25] offset:{L_FL}")
    stamp(3)
    a("L_hb1:")
    a("s_waitcnt lgkmcnt(0)")
    a("s_barrier")
    if prio:
        a("s_setprio 0")
    if abl == 1:
        a("s_branch L_hdone")

    a(f"ds_read_b32 v1, v8 offset:{L_FL}")
    a("v_bfe_u32 v2, v0, 1, 3")
    a("v_lshlrev_b32 v24, 12, v2")
    a("v_lshrrev_b32 v2, 4, v0")
    a("v_lshl_add_u32 v24, v2, 5, v24")
    a("v_and_b32 v2, 1, v0")
    a("v_lshl_add_u32 v24, v2, 4, v24")
    a("s_lshl_b32 s26, s32, 15")
    a("s_lshl_b32 s27, s5, 7")
    a("s_add_u32 s26, s26, s27")
    a("s_add_u32 s26, s26, s34")
    a("v_add_u32 v24, s26, v24")
    a("v_lshrrev_b32 v3, 5, v0")
    a("v_bfe_u32 v2, v0, 2, 2")
    a("v_lshl_add_u32 v3, v3, 2, v2")
    a("v_lshlrev_b32 v3, 12, v3")
    a("v_bfe_u32 v2, v0, 4, 1")
    a("v_lshl_add_u32 v3, v2, 6, v3")
    a("v_and_b32 v2, 3, v0")
    a("v_lshl_add_u32 v3, v2, 4, v3")
    a("v_add_u32 v15, s26, v3")
    a("s_waitcnt vmcnt(0) lgkmcnt(0)")
    a("v_readfirstlane_b32 s94, v1")
    slab_perm(RAW2, OPS2)
    slab_mfma(26, 27, OPS2)
    for kap in range(4):
        a(f"v_and_or_b32 v{32+kap}, v{DO+4*kap}, s91, v6")
    pub(lambda fl: a(f"global_store_dwordx4 v24, v[32:35], s[60:61] {fl}"))
    for i in range(16):
        a(f"v_mov_b32 v{RAW2+i}, 0")
    a("s_mov_b32 s16, s44")
    a("s_mov_b32 s17, s45")
    a("s_mov_b32 s18, 0x400000")
    a("s_mov_b32 s20, s52")
    a("s_mov_b32 s21, s53")
    a(f"s_mov_b32 s22, {1792*1024}")
    a("s_lshl_b32 s26, s5, 12")
    a("s_add_u32 s26, s26, s34")
    a("v_lshl_add_u32 v21, v0, 4, s26")
    a("s_lshl_b32 s26, s5, 11")
    a("s_add_u32 s26, s26, s34")
    a(f"s_add_u32 s26, s26, {IN1}")
    a("v_lshl_add_u32 v14, v0, 4, s26")
    a("v_and_b32 v1, 7, v0")
    a("v_lshlrev_b32 v22, 4, v1")
    a("v_bfe_u32 v1, v0, 4, 1")
    a("v_lshl_add_u32 v22, v1, 3, v22")
    a("v_lshrrev_b32 v1, 5, v0")
    a("v_lshl_add_u32 v22, v1, 2, v22")
    a("v_add_u32 v53, 16, v7")
    a("v_and_b32 v52, 0xfff, v53")
    a("s_cmp_eq_u32 s32, 0")
    a("s_cbranch_scc1 L_h0mid")
    a("s_cmp_eq_u32 s32, 1")
    a("s_cbranch_scc0 L_late")

    a("v_lshrrev_b32 v1, 5, v0")
    a("v_lshlrev_b32 v1, 4, v1")
    a("v_and_b32 v2, 15, v0")
    a("v_add_u32 v1, v1, v2")
    a("v_lshlrev_b32 v1, 5, v1")
    a("v_bfe_u32 v2, v0, 4, 1")
    a("v_lshl_add_u32 v2, v2, 10, v1")
    a("global_load_dwordx4 v[56:59], v2, s[36:37]")
    a("global_load_dwordx4 v[60:63], v2, s[36:37] offset:16")
    a("global_load_dwordx4 v[40:43], v1, s[54:55]")
    a("global_load_dwordx4 v[44:47], v1, s[54:55] offset:16")
    a("v_mov_b32 v10, 0")
    a("s_waitcnt vmcnt(0)")
    for i in range(8):
        a(f"v_lshlrev_b32 v48, 16, v{56+i}")
        a(f"v_and_b32 v49, s90, v{56+i}")
        a(f"v_lshlrev_b32 v50, 16, v{40+i}")
        a(f"v_and_b32 v51, s90, v{40+i}")
        a("v_mul_f32 v48, v48, v50")
        a("v_mul_f32 v49, v49, v51")
        a("v_cvt_pk_bf16_f32 v48, v48, v49")
        a("v_and_b32 v49, s90, v48")
        a("v_lshlrev_b32 v48, 16, v48")
        a("v_add_f32 v10, v10, v48")
        a("v_add_f32 v10, v10, v49")
    for rr in (8, 4, 2, 1):
        a(f"v_add_f32_dpp v10, v10, v10 row_ror:{rr} {FULL}")
    a("v_mov_b32 v48, v10")
    a("v_permlane32_swap_b32 v10, v48")
    a("v_add_f32 v10, v10, v48")
    a("v_cvt_pk_bf16_f32 v10, v10, v10")
    a("v_and_b32 v10, s90, v10")
    a("v_mul_f32 v10, s89, v10")
    a("v_exp_f32 v10, -v10")
    a("v_add_f32 v10, 1.0, v10")
    a("v_rcp_f32 v10, v10")
    a("v_cvt_pk_bf16_f32 v10, v10, v10")
    a("v_and_b32 v10, s90, v10")
    a("v_sub_f32 v11, 1.0, v10")
    a("v_cvt_pk_bf16_f32 v11, v11, v11")
    a("v_and_b32 v11, s90, v11")
    a("v_lshlrev_b32 v1, 3, v0")
    a(f"ds_write_b64 v1, v[10:11] offset:{L_GT}")
    a("s_branch L_hrdy")

    a("L_h0mid:")
    lds_spin(L_CS, 4, "v2", "v8", sleep=4)
    a("v_and_b32 v1, 3, v0")
    a("v_lshlrev_b32 v2, 4, v1")
    a(f"ds_read_b128 v[36:39], v2 offset:{L_M}")
    a(f"ds_read_b128 v[28:31], v2 offset:{L_L}")
    a("s_lshl_b32 s26, s5, 6")
    a("s_add_u32 s26, s26, s34")
    a(f"s_add_u32 s26, s26, {STAT}")
    a("v_add_u32 v1, s26, v2")
    a("v_mov_b32 v42, v7")
    a("v_mov_b32 v43, v7")
    a("s_waitcnt lgkmcnt(0)")
    a("v_max3_f32 v40, v36, v37, v38")
    a("v_max_f32 v40, v40, v39")
    for i in range(4):
        a(f"v_sub_f32 v{36+i}, v{36+i}, v40")
    for i in range(4):
        a(f"v_exp_f32 v{36+i}, v{36+i}")
    a("v_mul_f32 v41, v36, v28")
    for i in range(1, 4):
        a(f"v_fmac_f32 v41, v{36+i}, v{28+i}")
    a("s_mov_b64 exec, 0xf")
    pub(lambda fl: a(f"global_store_dwordx4 v1, v[40:43], s[60:61] {fl}"))
    a("s_mov_b64 exec, -1")
    stamp(4)
    a("v_bfe_u32 v1, v0, 2, 1")
    a("v_lshlrev_b32 v1, 4, v1")
    a("v_bfe_u32 v2, v0, 3, 1")
    a("v_lshl_add_u32 v1, v2, 2, v1")
    a("v_and_b32 v2, 3, v0")
    a("v_add_u32 v1, v1, v2")
    a("s_lshr_b32 s27, s5, 3")
    a("s_lshl_b32 s27, s27, 4")
    a("s_add_u32 s26, s34, s27")
    a(f"s_add_u32 s26, s26, {STAT}")
    a("v_lshl_add_u32 v25, v1, 6, s26")
    a("v_lshrrev_b32 v1, 5, v0")
    a("v_lshlrev_b32 v1, 1, v1")
    a("v_bfe_u32 v2, v0, 3, 1")
    a("v_add_u32 v1, v1, v2")
    a("v_and_b32 v2, 3, v0")
    a("v_lshl_add_u32 v1, v1, 2, v2")
    a("v_lshlrev_b32 v9, 7, v1")
    a("v_bfe_u32 v1, v0, 2, 1")
    a("v_lshl_add_u32 v9, v1, 5, v9")
    a("v_bfe_u32 v1, v0, 4, 1")
    a("v_lshl_add_u32 v9, v1, 4, v9")
    a("s_lshl_b32 s26, s5, 12")
    a("s_add_u32 s26, s26, s34")
    a("v_add_u32 v9, s26, v9")
    a("v_mov_b32 v46, 0")
    a("v_mov_b32 v47, 0")
    a("s_cmp_ge_u32 s5, 28")
    a("s_cbranch_scc1 L_noglu")
    regs = list(range(GA, GA + 16))
    poll(lambda: gl([(GA + 4 * t, (t & 1) * 2048 + (t >> 1) * 64) for t in range(4)], 9),
         lambda: tagcheck(regs, "0xfff", 7), sleep=stsleep)
    strip(regs)
    G, U = GA, GA + 8
    for m in (G, U):
        for pr in (0, 2):
            pkadd(m + pr, m + 4 + pr)
    for ctl in XOR3:
        for m in (G, U):
            for i in range(4):
                a(f"v_add_f32_dpp v{m+i}, v{m+i}, v{m+i} {ctl} {FULL}")
    for m in (G, U):
        for i in range(4):
            a(f"v_mov_b32 v{m+4+i}, v{m+i}")
    for m in (G, U):
        for i in range(4):
            a(f"v_permlane32_swap_b32 v{m+i}, v{m+4+i}")
    for m in (G, U):
        for i in range(4):
            a(f"v_add_f32 v{m+i}, v{m+i}, v{m+4+i}")

    def rnd4(v):
        a(f"v_cvt_pk_bf16_f32 v28, v{v}, v{v+1}")
        a(f"v_cvt_pk_bf16_f32 v29, v{v+2}, v{v+3}")
        a(f"v_lshlrev_b32 v{v}, 16, v28")
        a(f"v_and_b32 v{v+1}, s90, v28")
        a(f"v_lshlrev_b32 v{v+2}, 16, v29")
        a(f"v_and_b32 v{v+3}, s90, v29")
    rnd4(G)
    rnd4(U)
    for i in range(4):
        a(f"v_mul_f32 v{G+i}, s89, v{G+i}")
    for i in range(4):
        a(f"v_exp_f32 v{G+i}, -v{G+i}")
    for i in range(4):
        a(f"v_add_f32 v{G+i}, 1.0, v{G+i}")
    for i in range(4):
        a(f"v_rcp_f32 v{G+i}, v{G+i}")
    rnd4(G)
    for i in range(4):
        a(f"v_mul_f32 v{G+i}, v{G+i}, v{U+i}")
    a("s_mov_b32 exec_hi, 0")
    a(f"v_cvt_pk_bf16_f32 v46, v{G}, v{G+1}")
    a(f"v_cvt_pk_bf16_f32 v47, v{G+2}, v{G+3}")
    a("s_mov_b64 exec, -1")
    a("L_noglu:")
    a("v_mov_b32 v2, 1")
    a(f"ds_write_b32 v8, v2 offset:{L_GG}")
    lds_spin(L_TR, 1, "v2", "v8", sleep=4, cmp="ge")
    poll(lambda: gl([(36, 0), (48, 512)], 25),
         lambda: [a("s_waitcnt vmcnt(0)"), a("v_bitop3_b32 v1, v38, v50, v7 bitop3:0x7e"), a("v_cmp_ne_u32 vcc, 0, v1")], sleep=stsleep)
    a("v_max_f32 v2, v36, v48")
    for ctl in XOR3:
        a(f"v_max_f32_dpp v2, v2, v2 {ctl} {FULL}")
    a("v_sub_f32 v44, v36, v2")
    a("v_sub_f32 v45, v48, v2")
    a("v_exp_f32 v44, v44")
    a("v_exp_f32 v45, v45")
    a("v_mul_f32 v2, v44, v37")
    a("v_fmac_f32 v2, v45, v49")
    for ctl in XOR3:
        a(f"v_add_f32_dpp v2, v2, v2 {ctl} {FULL}")
    a("v_rcp_f32 v2, v2")
    a("v_lshlrev_b32 v1, 4, v0")
    a("v_mul_f32 v44, v44, v2")
    a("v_mul_f32 v45, v45, v2")
    a(f"ds_write_b128 v1, v[44:47] offset:{L_W}")
    stamp(5)
    a("L_hrdy:")
    a("s_mov_b64 exec, 1")
    a("v_mov_b32 v2, 1")
    a(f"ds_add_u32 v8, v2 offset:{L_HR}")
    a("s_mov_b64 exec, -1")
    a("L_late:")
    if abl == 3:
        a("s_branch L_hdone")

    a("s_mul_i32 s25, s4, 224")
    a("s_lshl_b32 s26, s5, 3")
    a("s_add_u32 s25, s25, s26")
    a("s_lshl_b32 s25, s25, 10")
    a("s_lshl_b32 s24, s4, 5")
    a("s_add_u32 s24, s24, s5")
    a("s_lshl_b32 s24, s24, 14")
    a("s_lshl_b32 s26, s5, 10")
    a(f"s_add_u32 s26, s26, {IN3}")
    a("v_lshl_add_u32 v25, v0, 4, s26")
    a("s_lshl_b32 s27, s4, 7")
    a("s_add_u32 s26, s26, s27")
    a("v_add_u32 v24, s26, v22")
    a("v_and_b32 v1, 63, v22")
    a("v_lshrrev_b32 v1, 1, v1")
    a("v_bfe_u32 v2, v0, 2, 1")
    a("v_lshl_add_u32 v1, v2, 10, v1")
    a("s_lshl_b32 s26, s5, 5")
    a("v_add_u32 v9, s26, v1")
    lds_spin(L_HR, 2, "v2", "v8", sleep=4)
    a("v_lshlrev_b32 v1, 4, v0")
    a("v_lshlrev_b32 v2, 3, v0")
    a(f"ds_read_b128 v[44:47], v1 offset:{L_W}")
    a(f"ds_read_b64 v[10:11], v2 offset:{L_GT}")
    lds_spin(L_TR, 2, "v2", "v8", sleep=2)
    a("s_cmp_ge_u32 s5, 28")
    a("s_cbranch_scc1 L_nowd")
    a("s_mov_b32 exec_hi, 0")
    for beta in range(2):
        for e in range(4):
            r = RAW2 + (beta * 4 + e) * 2
            a(f"buffer_load_dwordx2 v[{r}:{r+1}], v23, s[20:23], s25 offen offset:{e*1024+beta*128} {ntw}")
    a("s_mov_b64 exec, -1")
    a("L_nowd:")
    for beta in range(2):
        for e in range(4):
            r = RAW3 + (beta * 4 + e) * 2
            a(f"buffer_load_dwordx2 v[{r}:{r+1}], v23, s[16:19], s24 offen offset:{e*1024+beta*128} {ntw}")
    nw = 0
    if warm:
        a("s_lshl_b32 s26, s32, 10")
        a("v_add_u32 v1, s26, v21")
        a("global_load_dwordx4 v[64:67], v1, s[60:61] sc1")
        a("s_and_b32 s26, s26, 0x400")
        a("v_add_u32 v1, s26, v14")
        a("global_load_dwordx4 v[68:71], v1, s[60:61] sc1")
        nw = 2
    a("v_mov_b32 v12, v44")
    a("v_mov_b32 v13, v45")
    a(f"s_waitcnt vmcnt({8+nw})")
    slab_perm(RAW2, OPS2)
    slab_mfma(46, 47, OPS2)
    for kap in range(4):
        a(f"v_mul_f32 v{16+kap}, v11, v{DO+4*kap}")
    a(f"s_waitcnt vmcnt({nw})")
    slab_perm(RAW3, OPS3)
    stamp(6)
    if abl == 4:
        a("s_branch L_hdone")
    lds_spin(L_CO, 4, "v2", "v8", sleep=1)
    tstamp(1)
    regs = list(range(64, 72))
    poll(lambda: gl([(64, 0), (68, 1024)], 14), lambda: tagcheck(regs, "0xfff", 53), sleep=p1sleep)
    tstamp(2)
    strip(regs)
    for pr in range(2):
        a(f"v_pk_mul_f32 v[{64+2*pr}:{65+2*pr}], v[{64+2*pr}:{65+2*pr}], v[12:13] op_sel_hi:[1,0]")
    for pr in range(2):
        a(f"v_pk_fma_f32 v[{64+2*pr}:{65+2*pr}], v[{68+2*pr}:{69+2*pr}], v[12:13], v[{64+2*pr}:{65+2*pr}] op_sel:[0,1,0] op_sel_hi:[1,1,1]")
    for ctl in XOR3:
        for i in range(4):
            a(f"v_add_f32_dpp v{64+i}, v{64+i}, v{64+i} {ctl} {FULL}")
    a("v_cvt_pk_bf16_f32 v28, v64, v65")
    a("v_cvt_pk_bf16_f32 v29, v66, v67")
    slab_mfma(28, 29, OPS3)
    for kap in range(4):
        a(f"v_fma_f32 v{16+kap}, v10, v{DO+4*kap}, v{16+kap}")
    for kap in range(4):
        a(f"v_and_or_b32 v{16+kap}, v{16+kap}, s91, v52")
    pub(lambda fl: a(f"global_store_dwordx4 v15, v[16:19], s[60:61] {fl}"))
    stamp(7)
    a("s_cmp_lg_u32 s32, 0")
    a("s_cbranch_scc1 L_hdone")
    regs = list(range(GA, GA + 16))
    poll(lambda: gl([(GA + 4 * t, t * 1024) for t in range(4)], 21), lambda: tagcheck(regs, "0xfff", 53))
    strip(regs)
    sum4(GA)
    treduce(GA)
    tstamp(3)
    a(f"v_and_or_b32 v{GA}, v{GA}, s91, v6")
    half_exec()
    a(f"global_store_dword v24, v{GA}, s[60:61] sc1")
    a("s_mov_b64 exec, -1")
    tstamp(4)
    a("s_and_b32 s26, s5, 7")
    a("s_cmp_lg_u32 s26, s4")
    a("s_cbranch_scc1 L_hdone")
    if delay3:
        a(f"s_sleep {delay3}")
    regs = list(range(GA, GA + 4))
    if atom:
        a("v_mov_b32 v32, 0")
        a("v_mov_b32 v33, 0")
        poll(lambda: [a(f"global_atomic_add_x2 v[{GA+2*t}:{GA+2*t+1}], v25, v[32:33], s[60:61] offset:{t*8} sc0 sc1") for t in range(2)],
             lambda: tagcheck(regs, "0xfff", 7))
    else:
        poll(lambda: gl([(GA, 0)], 25), lambda: tagcheck(regs, "0xfff", 7))
    tstamp(5)
    strip(regs)
    treduce(GA)
    a(f"v_cvt_pk_bf16_f32 v{GA}, v{GA}, v{GA}")
    half_exec()
    a(f"global_store_short v9, v{GA}, s[56:57]")
    a("s_cmp_lg_u32 s2, 0")
    a("s_cbranch_scc1 L_noep")
    a("s_mov_b64 exec, 1")
    a(f"v_mov_b32 v1, {EP}")
    a("global_store_dword v1, v7, s[60:61] sc1")
    a("L_noep:")
    stamp(8)
    a("L_hdone:")
    stamp_out()
    a("s_endpgm")
    i = 0
    while i < len(cold):
        cold[i]()
        i += 1
    a("L_abort:")
    a("s_mov_b64 exec, 1")
    a("v_mov_b32 v1, 8")
    a("v_mov_b32 v2, 0xdead")
    a("global_store_dword v1, v2, s[58:59]")
    a("L_end:")
    a("s_endpgm")
    a.pad()

    out = HEADER
    out += "; Generated by my own script; one persistent workgroup per CU: four waves stream K then V (paced),\n"
    out += "; four helper waves do the projections and the tagged hand-offs between workgroups.\n"
    out += f"; @launch grid=(256,1,1) block=(512,1,1) lds={LDS_BYTES}\n"
    out += '.amdgcn_target "amdgcn-amd-amdhsa--gfx950"\n.text\n'
    out += f".globl {KN}\n.p2align 8\n.type {KN},@function\n"
    out += a.text()
    out += '.section .rodata,"a"\n.p2align 6\n'
    out += f".amdhsa_kernel {KN}\n"
    out += "  .amdhsa_next_free_vgpr 256\n  .amdhsa_next_free_sgpr 102\n  .amdhsa_accum_offset 256\n"
    out += "  .amdhsa_group_segment_fixed_size 0\n  .amdhsa_kernarg_size 104\n  .amdhsa_user_sgpr_count 2\n"
    out += "  .amdhsa_user_sgpr_kernarg_segment_ptr 1\n  .amdhsa_system_sgpr_workgroup_id_x 1\n.end_amdhsa_kernel\n"
    return out


if __name__ == "__main__":
    kw = eval("dict(" + (sys.argv[2] if len(sys.argv) > 2 else "") + ")")
    open(sys.argv[1], "w").write(gen(**kw))
```

```python
import sys
from asmlib import Asm

KN = "gated_mix__gqa_block_cached__glu_gated_glu__decode_kernel"
HEADER = open("gated_mix__gqa_block_cached__glu_gated_glu__decode.s.ref").read().split("; Override launch")[0]

GSTR = 0x38000
RSG = 0x00000
IN1 = 0x20000
QP = 0x30000
STAT = 0x34000
IN3 = 0x1C0000
EP = 0x1C8000
STAMPS = 0x900000
TAGC = 0x9E3779B9
L_Q = 0
L_CS = 1024
L_CO = 1028
L_TR = 1032
L_HR = 1036
L_FL = 1040
L_GG = 1048
L_M = 1088
L_L = 1152
L_W = 2048
L_GT = 3072
L_O = 4096
LDS_BYTES = 4096 + 8192
FULL = "row_mask:0xf bank_mask:0xf"
XOR3 = ("quad_perm:[1,0,3,2]", "quad_perm:[2,3,0,1]", "row_ror:8")


def gen(D=6, B=40, NS=44, trig1=88, trig=122, budget=260, fbk=48, qdelay=0, qsleep=1, p1sleep=0, stsleep=8, delay3=0,
        atom=False, force_slow=False, warm=True, hfirst=True, D2=None, n2=96, D0=None, n0=0, glulate=False,
        stamps=False, tdbg=False, abl=0, kvfl="nt", ntw="nt", fwat=32, prio=0, cpf=0, TB=12, spre=0):
    a = Asm()
    uid = [0]

    def new():
        uid[0] += 1
        return uid[0]

    def tstamp(idx):
        if stamps and tdbg:
            a(f"s_memrealtime s[{70+2*idx}:{71+2*idx}]")

    def stamp(idx):
        if stamps and not (tdbg and 1 <= idx <= 5):
            a(f"s_memrealtime s[{70+2*idx}:{71+2*idx}]")

    def stamp_out():
        if stamps:
            a("s_waitcnt lgkmcnt(0)")
            a("s_mov_b64 exec, -1")
            for k in range(9):
                a(f"v_writelane_b32 v3, s{70+2*k}, {k}")
            a("s_lshl_b32 s26, s2, 3")
            a(f"s_xor_b32 s27, s3, {4 if hfirst else 0}")
            a("s_add_u32 s26, s26, s27")
            a("s_lshl_b32 s26, s26, 6")
            a(f"s_add_u32 s26, s26, {STAMPS}")
            a("v_lshlrev_b32 v1, 2, v0")
            a("v_add_u32 v1, s26, v1")
            a("s_mov_b64 exec, 0xffff")
            a("global_store_dword v1, v3, s[60:61]")

    def lds_spin(addr, val, vt, va, sleep=1, cmp="eq"):
        n = new()
        a(f"L_sp{n}:")
        a(f"ds_read_b32 {vt}, {va} offset:{addr}")
        a("s_waitcnt lgkmcnt(0)")
        a(f"v_readfirstlane_b32 s26, {vt}")
        a(f"s_cmp_{cmp}_u32 s26, {val}")
        a(f"s_cbranch_scc1 L_spd{n}")
        a(f"s_sleep {sleep}")
        a("s_sub_u32 s29, s29, 1")
        a(f"s_cbranch_scc0 L_sp{n}")
        a("s_branch L_abort")
        a(f"L_spd{n}:")

    cold = []

    def pub(emit):
        n = new()
        a("s_cmp_eq_u32 s94, 2")
        a(f"s_cbranch_scc0 L_pubs{n}")
        emit("")
        a(f"L_pubd{n}:")

        def slow():
            a(f"L_pubs{n}:")
            emit("sc1")
            a(f"s_branch L_pubd{n}")
        cold.append(slow)

    def half_exec():
        a("s_mov_b32 exec_lo, 0x00ff00ff")
        a("s_mov_b32 exec_hi, 0x00ff00ff")

    RAW, OPS, RAW2, OPS2, RAW3, OPS3, GA, AO, DO = 64, 80, 96, 112, 128, 144, 160, 224, 228

    a(f"{KN}:")
    a("s_cmp_ge_u32 s2, 256")
    a("s_cbranch_scc1 L_end")
    if stamps:
        for k in range(9):
            a(f"s_mov_b32 s{70+2*k}, 0")
    stamp(0)
    a("s_load_dwordx16 s[36:51], s[0:1], 0")
    a("s_load_dwordx8 s[52:59], s[0:1], 64")
    a("s_load_dwordx2 s[60:61], s[0:1], 96")
    a("v_lshrrev_b32 v1, 6, v0")
    a("v_and_b32 v0, 63, v0")
    a("v_readfirstlane_b32 s3, v1")
    a("s_and_b32 s4, s2, 7")
    a("s_lshr_b32 s5, s2, 3")
    a("s_mov_b32 s11, 0x20000")
    a("s_mov_b32 s15, 0x20000")
    a("v_lshrrev_b32 v2, 4, v0")
    a("s_and_b32 s32, s3, 3")
    a("s_cmp_ge_u32 s3, 4")
    a(f"s_cbranch_scc{1 if hfirst else 0} L_stream")

    if prio:
        a(f"s_setprio {prio}")
    a("v_and_b32 v4, 15, v0")
    a("v_lshlrev_b32 v4, 3, v4")
    a("v_lshl_add_u32 v3, v2, 16, v4")
    a("s_and_b32 s26, s5, 7")
    a("s_lshl_b32 s26, s26, 7")
    a("s_lshl_b32 s27, s4, 10")
    a("s_add_u32 s26, s26, s27")
    a("v_add_u32 v3, s26, v3")
    a("s_lshr_b32 s26, s5, 3")
    a("s_lshl_b32 s26, s26, 2")
    a("s_add_u32 s26, s26, s32")
    a("s_lshl_b32 s24, s26, 18")
    a("s_lshl_b32 s26, s26, 6")
    a("v_bfe_u32 v1, v0, 2, 1")
    a("v_lshlrev_b32 v9, 10, v1")
    a("v_lshl_add_u32 v1, v2, 4, v9")
    a("v_add_u32 v1, s26, v1")
    a(f"v_mov_b32 v5, {EP}")
    a("s_mov_b32 s10, 0x400000")
    a("s_movk_i32 s25, 0x2000")
    a("s_waitcnt lgkmcnt(0)")
    if spre:
        a(f"s_cmp_eq_u32 s32, {spre-1}")
        a("s_cbranch_scc0 L_nospre")
        a("s_load_dword s64, s[42:43], s24")
        a("s_load_dword s65, s[36:37], 0")
        a(f"s_load_dword s66, s[60:61], 0")
        a("s_load_dword s67, s[48:49], 0")
        a("s_load_dword s68, s[50:51], 0")
        a("s_lshr_b32 s26, s5, 4")
        a("s_lshl_b32 s26, s26, 7")
        a("s_lshl_b32 s27, s4, 4")
        a("s_add_u32 s26, s26, s27")
        a("s_and_b32 s27, s5, 15")
        a("s_add_u32 s26, s26, s27")
        a("s_lshl_b32 s26, s26, 18")
        a("s_load_dword s69, s[40:41], s26")
        a("s_load_dword s95, s[54:55], 0")
        a("s_load_dword s96, s[52:53], 0")
        a("s_lshl_b32 s27, s4, 19")
        a("s_load_dword s97, s[44:45], s27")
        a("s_load_dword s98, s[56:57], 0")
        a("L_nospre:")
    a("s_mov_b32 s8, s42")
    a("s_mov_b32 s9, s43")
    for e in range(8):
        a(f"buffer_load_dwordx2 v[{RAW+2*e}:{RAW+2*e+1}], v3, s[8:11], s24 offen {ntw}")
        if e < 7:
            a("s_add_u32 s24, s24, s25")
    a(f"global_load_dwordx4 v[{AO}:{AO+3}], v1, s[36:37]")
    a("global_load_dword v7, v5, s[60:61]")
    a("s_branch L_helper")

    VQ, VO, VS, VD, VT, VP, VMA, VMB, VMX, VL, VF, RING = 4, 8, 16, 32, 64, 68, 72, 73, 74, 75, 76, 80
    assert RING + NS * 4 <= 256
    a("L_stream:")
    a("s_lshr_b32 s6, s5, 4")
    a("s_and_b32 s7, s5, 15")
    a("s_lshl_b32 s26, s6, 3")
    a("s_add_u32 s26, s26, s4")
    a("s_lshl_b32 s26, s26, 4")
    a("s_add_u32 s26, s26, s7")
    a("s_lshl_b32 s26, s26, 8")
    a("s_add_u32 s26, s26, s32")
    a("s_lshl_b32 s26, s26, 10")
    a("v_lshlrev_b32 v2, 6, v2")
    a("v_bfe_u32 v3, v0, 2, 2")
    a("v_lshl_add_u32 v2, v3, 8, v2")
    a("v_and_b32 v3, 3, v0")
    a("v_lshl_add_u32 v1, v3, 4, v2")
    a("v_add_u32 v1, s26, v1")
    a("s_mov_b32 s10, 0x4000000")
    a("s_mov_b32 s24, 0")
    a("s_movk_i32 s25, 0x1000")
    a("s_waitcnt lgkmcnt(0)")
    a("s_mov_b32 s8, s38")
    a("s_mov_b32 s9, s39")

    def slot(n):
        return RING + (n % NS) * 4

    def dep(n):
        if D0 is not None and n < n0:
            return D0
        return D2 if (D2 is not None and n >= n2) else D

    known = [-1]

    def issue(n):
        if n - dep(n) > known[0]:
            a(f"s_waitcnt vmcnt({dep(n)-1})")
            known[0] = n - dep(n)
        if n == 64:
            a("s_mov_b32 s24, 0")
        r = slot(n)
        if n < 64:
            a(f"buffer_load_dwordx4 v[{r}:{r+3}], v1, s[8:11], s24 offen {kvfl}")
        else:
            a(f"buffer_load_dwordx4 v[{r}:{r+3}], v2, s[12:15], s24 offen {kvfl}")
        if n != 63 and n != 127:
            a("s_add_u32 s24, s24, s25")

    def setup_rest():
        a("v_lshl_add_u32 v2, v0, 4, s26")
        a("s_mov_b32 s12, s40")
        a("s_mov_b32 s13, s41")
        a("s_mov_b32 s14, 0x4000000")
        a("s_mov_b32 s29, 0x40000")
        a("s_mov_b32 s64, 0x22222222")
        a("s_mov_b32 s65, 0x22222222")
        a("s_mov_b32 s66, 0x44444444")
        a("s_mov_b32 s67, 0x44444444")
        a("s_mov_b32 s68, 0x88888888")
        a("s_mov_b32 s69, 0x88888888")
        a("s_mov_b32 s88, 0x3db504f3")
        a("s_mov_b32 s89, 0x3fb8aa3b")
        a("s_mov_b32 s90, 0xffff0000")
        a("s_mov_b32 s91, 0xfffff000")
        a("v_mov_b32 v64, 0xffff")
        a("v_mov_b32 v65, s90")
        a(f"v_cndmask_b32 v{VMA}, v64, v65, s[64:65]")
        a("s_or_b64 s[26:27], s[66:67], s[68:69]")
        a(f"v_cndmask_b32 v{VMA}, v{VMA}, 0, s[26:27]")
        a(f"v_cndmask_b32 v{VMB}, 0, v64, s[66:67]")
        a(f"v_cndmask_b32 v{VMB}, v{VMB}, v65, s[68:69]")
        for i in range(8):
            a(f"v_mov_b32 v{VO+i}, 0")
        a(f"v_mov_b32 v{VMX}, 0xff800000")
        a(f"v_mov_b32 v{VL}, 0")

    for n in range(B):
        issue(n)
        if n == dep(0) - 1:
            setup_rest()
    stamp(1)
    a("s_barrier")
    a("v_lshlrev_b32 v3, 4, v0")
    a(f"ds_read_b128 v[{VQ}:{VQ+3}], v3 offset:{L_Q}")
    a("s_waitcnt lgkmcnt(0)")
    stamp(2)

    items = []

    def kb(beta):
        def f():
            if beta < 16:
                d = VD + (beta & 1) * 16
                for m in range(4):
                    r = slot(4 * beta + m)
                    a(f"v_mfma_f32_16x16x32_bf16 v[{d+4*m}:{d+4*m+3}], v[{r}:{r+3}], v[{VQ}:{VQ+3}], 0")
            if beta > 0:
                p = beta - 1
                d = VD + (p & 1) * 16
                for c in range(4):
                    for m in range(4):
                        qp = f"quad_perm:[{c},{c},{c},{c}] {FULL}"
                        if c == 0:
                            a(f"v_mov_b32_dpp v{VT+m}, v{d+4*m} {qp}")
                        else:
                            a(f"v_add_f32_dpp v{VT+m}, v{d+4*m+c}, v{VT+m} {qp}")
                s = VS + p
                a(f"v_cndmask_b32 v{s}, v{VT}, v{VT+1}, s[64:65]")
                a(f"v_cndmask_b32 v{s}, v{s}, v{VT+2}, s[66:67]")
                a(f"v_cndmask_b32 v{s}, v{s}, v{VT+3}, s[68:69]")
                if p & 1:
                    s0, s1 = s - 1, s
                    a(f"v_cvt_pk_bf16_f32 v{VT}, v{s0}, v{s1}")
                    a(f"v_lshlrev_b32 v{s0}, 16, v{VT}")
                    a(f"v_and_b32 v{s1}, s90, v{VT}")
                    a(f"v_mul_f32 v{s0}, s88, v{s0}")
                    a(f"v_mul_f32 v{s1}, s88, v{s1}")
                    a(f"v_cvt_pk_bf16_f32 v{VT}, v{s0}, v{s1}")
                    a(f"v_lshlrev_b32 v{s0}, 16, v{VT}")
                    a(f"v_and_b32 v{s1}, s90, v{VT}")
                    a(f"v_max3_f32 v{VMX}, v{VMX}, v{s0}, v{s1}")
        return f

    for beta in range(17):
        items.append((min(4 * beta + 3, 63), 64 + 19 * 4 + (36 if beta % 2 == 0 else 0), kb(beta)))

    def allred(v, op, t):
        a(f"{op}_dpp v{v}, v{v}, v{v} quad_perm:[1,0,3,2] {FULL}")
        a(f"{op}_dpp v{v}, v{v}, v{v} quad_perm:[2,3,0,1] {FULL}")
        a(f"v_mov_b32 v{t}, v{v}")
        a(f"v_permlane16_swap_b32 v{v}, v{t}")
        a(f"{op} v{v}, v{v}, v{t}")
        a(f"v_mov_b32 v{t}, v{v}")
        a(f"v_permlane32_swap_b32 v{v}, v{t}")
        a(f"{op} v{v}, v{v}, v{t}")

    def fin():
        allred(VMX, "v_max_f32", VT)
        a(f"v_mul_f32 v{VMX}, s89, v{VMX}")
        stamp(3)
    items.append((63, 80, fin))

    def expc(i0):
        def f():
            for i in range(i0, i0 + 4):
                a(f"v_fma_f32 v{VS+i}, v{VS+i}, s89, -v{VMX}")
            for i in range(i0, i0 + 4):
                a(f"v_exp_f32 v{VS+i}, v{VS+i}")
            for i in range(i0, i0 + 4):
                a(f"v_add_f32 v{VL}, v{VL}, v{VS+i}")
            for i in range(i0, i0 + 4):
                a(f"v_cvt_pk_bf16_f32 v{VS+i}, v{VS+i}, v{VS+i}")
        return f
    for i0 in range(0, 16, 4):
        items.append((63, 90, expc(i0)))

    def statout():
        allred(VL, "v_add_f32", VT)
        a("v_lshlrev_b32 v3, 2, v0")
        a("s_lshl_b32 s26, s32, 2")
        a("v_add_u32 v3, s26, v3")
        a("s_mov_b64 exec, 0x1111")
        a(f"ds_write_b32 v3, v{VMX} offset:{L_M}")
        a(f"ds_write_b32 v3, v{VL} offset:{L_L}")
        a("s_mov_b64 exec, 1")
        a(f"v_mov_b32 v{VT}, 1")
        a("v_mov_b32 v3, 0")
        a(f"ds_add_u32 v3, v{VT} offset:{L_CS}")
        a("s_mov_b64 exec, -1")
    items.append((63, 100, statout))

    def pbuild(n):
        p = VP + (n & 1) * 2
        m = n & 3
        qp = f"quad_perm:[{m},{m},{m},{m}] {FULL}"
        a(f"v_and_b32_dpp v{p}, v{VS+(n>>2)}, v{VMA} {qp}")
        a(f"v_and_b32_dpp v{p+1}, v{VS+(n>>2)}, v{VMB} {qp}")
    items.append((63, 8, lambda: pbuild(0)))

    def pv(n):
        def f():
            p = VP + (n & 1) * 2
            r = slot(64 + n)
            a(f"v_mfma_f32_16x16x16_bf16 v[{VO}:{VO+3}], v[{p}:{p+1}], v[{r}:{r+1}], v[{VO}:{VO+3}]")
            a(f"v_mfma_f32_16x16x16_bf16 v[{VO+4}:{VO+7}], v[{p}:{p+1}], v[{r+2}:{r+3}], v[{VO+4}:{VO+7}]")
            if n < 63:
                pbuild(n + 1)
        return f

    def fw_addr():
        a(f"v_lshrrev_b32 v{VT}, 1, v0")
        a(f"v_lshlrev_b32 v{VT}, 11, v{VT}")
        a(f"v_and_b32 v{VT+1}, 1, v0")
        a(f"v_lshl_add_u32 v1, v{VT+1}, 9, v{VT}")
        a("s_lshr_b32 s26, s7, 3")
        a("s_lshl_b32 s26, s26, 10")
        a("s_bfe_u32 s27, s7, 0x10002")
        a("s_lshl_b32 s27, s27, 7")
        a("s_add_u32 s26, s26, s27")
        a("s_lshl_b32 s27, s6, 6")
        a("s_add_u32 s26, s26, s27")
        a("s_and_b32 s27, s7, 3")
        a("s_lshl_b32 s27, s27, 4")
        a("s_add_u32 s26, s26, s27")
        a(f"s_mul_i32 s27, s4, {GSTR}")
        a("s_add_u32 s26, s26, s27")
        a(f"s_add_u32 s26, s26, {IN1}")
        a("v_add_u32 v1, s26, v1")
        a("s_lshl_b32 s26, s32, 11")
        a("v_lshlrev_b32 v33, 4, v0")
        a("v_add_u32 v32, s26, v33")
        a("v_mov_b32 v34, 0")
        a("v_mov_b32 v35, 1")

    def fw():
        lds_spin(L_CS, 4, f"v{VT}", "v34")
        if not glulate:
            lds_spin(L_GG, 1, f"v{VT}", "v34")
        a(f"ds_read_b64 v[36:37], v34 offset:{L_FL}")
        a("v_lshrrev_b32 v3, 4, v0")
        a("v_lshlrev_b32 v3, 4, v3")
        a(f"ds_read_b128 v[{VF}:{VF+3}], v3 offset:{L_M}")
        a("s_waitcnt lgkmcnt(0)")
        a("v_readfirstlane_b32 s94, v36")
        a(f"v_max3_f32 v{VT}, v{VF}, v{VF+1}, v{VF+2}")
        a(f"v_max_f32 v{VT}, v{VT}, v{VF+3}")
        for i in range(4):
            a(f"v_sub_f32 v{VF+i}, v{VF+i}, v{VT}")
        for i in range(4):
            a(f"v_exp_f32 v{VF+i}, v{VF+i}")

    for n in range(64):
        items.append((64 + n, 48, pv(n)))
        if n == fwat - 2:
            items.append((64 + n, 100, fw_addr))
        if n == fwat:
            items.append((64 + n, 300, fw))

    def trigger(val):
        n = new()
        a("s_cmp_lg_u32 s32, 0")
        a(f"s_cbranch_scc1 L_tr{n}")
        a("v_mov_b32 v3, 0")
        a(f"v_mov_b32 v{VT}, {val}")
        a(f"ds_write_b32 v3, v{VT} offset:{L_TR}")
        a(f"L_tr{n}:")

    it = 0
    freed = -1
    for n in range(B, 128):
        while freed < n - NS:
            need, cost, f = items[it]
            assert need <= n - 1
            if need > known[0]:
                a(f"s_waitcnt vmcnt({n-1-need})")
                known[0] = need
            f()
            freed = max(freed, need)
            it += 1
        issue(n)
        if n == trig1:
            trigger(1)
        if n == trig:
            trigger(2)
        if n == 64:
            stamp(4)
        acc = 0
        while it < len(items) and items[it][0] <= known[0] and acc < budget:
            need, cost, f = items[it]
            f()
            freed = max(freed, need)
            acc += cost
            it += 1
    stamp(5)
    while it < len(items):
        need, cost, f = items[it]
        if need > known[0]:
            a(f"s_waitcnt vmcnt({127-need})")
            known[0] = need
        f()
        it += 1
    stamp(6)
    a(f"ds_write_b128 v32, v[{VO}:{VO+3}] offset:{L_O}")
    a(f"ds_write_b128 v32, v[{VO+4}:{VO+7}] offset:{L_O+1024}")
    a("s_mov_b64 exec, 1")
    a(f"ds_add_rtn_u32 v35, v34, v35 offset:{L_CO}")
    a("s_waitcnt lgkmcnt(0)")
    a("v_readfirstlane_b32 s26, v35")
    tstamp(1)
    a("s_mov_b64 exec, -1")
    a("s_cmp_eq_u32 s26, 3")
    a("s_cbranch_scc0 L_sdone")
    X = 80
    for half in range(2):
        for w in range(4):
            r = X + (half * 4 + w) * 4
            a(f"ds_read_b128 v[{r}:{r+3}], v33 offset:{L_O + w*2048 + half*1024}")
    for half in range(2):
        for w in range(4):
            r = X + (half * 4 + w) * 4
            a(f"s_waitcnt lgkmcnt({0 if (stamps and tdbg) else 7 - half*4 - w})")
            fp = VF + (w & 2)
            sel = "op_sel:[0,1,0] op_sel_hi:[1,1,1]" if (w & 1) else "op_sel_hi:[1,0,1]"
            for pr in range(2):
                o = VO + half * 4 + pr * 2
                if w == 0:
                    a(f"v_pk_mul_f32 v[{o}:{o+1}], v[{r+2*pr}:{r+2*pr+1}], v[{fp}:{fp+1}] op_sel_hi:[1,0]")
                else:
                    a(f"v_pk_fma_f32 v[{o}:{o+1}], v[{r+2*pr}:{r+2*pr+1}], v[{fp}:{fp+1}], v[{o}:{o+1}] {sel}")
        for i in range(4):
            a(f"v_and_or_b32 v{VO+half*4+i}, v{VO+half*4+i}, s91, v37")
        pub(lambda fl, half=half: a(f"global_store_dwordx4 v1, v[{VO+half*4}:{VO+half*4+3}], s[60:61] offset:{half*256} {fl}"))
    stamp(7)
    a("L_sdone:")
    stamp_out()
    a("s_endpgm")

    def poll(loads, check, sleep=0):
        n = new()
        a(f"L_po{n}:")
        loads()
        check()
        a(f"s_cbranch_vccz L_pod{n}")
        if sleep:
            a(f"s_sleep {sleep}")
        a("s_sub_u32 s29, s29, 1")
        a(f"s_cbranch_scc0 L_po{n}")
        a("s_branch L_abort")
        a(f"L_pod{n}:")

    def gl(regs_offs, areg):
        for r, off in regs_offs:
            a(f"global_load_dwordx4 v[{r}:{r+3}], v{areg}, s[60:61] offset:{off} sc1")

    def tagcheck(regs, mask, tag, wait="vmcnt(0)"):
        a(f"s_waitcnt {wait}")
        tmp = [1, 2, 3, 4, 5, 28, 29, 30]
        t = []
        first = True
        for c0 in range(0, len(regs), 16):
            t = []
            for i in range(c0, min(c0 + 16, len(regs)), 2):
                d = tmp[(i - c0) // 2]
                a(f"v_bitop3_b32 v{d}, v{regs[i]}, v{regs[i+1]}, v{tag} bitop3:0x7e")
                t.append(d)
            if not first:
                t.append(31)
            while len(t) > 1:
                if len(t) >= 3:
                    a(f"v_or3_b32 v{t[0]}, v{t[0]}, v{t[1]}, v{t[2]}")
                    t = t[3:] + [t[0]]
                else:
                    a(f"v_or_b32 v{t[0]}, v{t[0]}, v{t[1]}")
                    t = [t[0]]
            if c0 + 16 < len(regs):
                a(f"v_mov_b32 v31, v{t[0]}")
            first = False
        a(f"v_and_b32 v{t[0]}, {mask}, v{t[0]}")
        a(f"v_cmp_ne_u32 vcc, 0, v{t[0]}")

    def strip(regs):
        for r in regs:
            a(f"v_and_b32 v{r}, s91, v{r}")

    def pkadd(d, s):
        a(f"v_pk_add_f32 v[{d}:{d+1}], v[{d}:{d+1}], v[{s}:{s+1}]")

    def sum4(x):
        for pr in (0, 2):
            pkadd(x + pr, x + 4 + pr)
            pkadd(x + 8 + pr, x + 12 + pr)
        for pr in (0, 2):
            pkadd(x + pr, x + 8 + pr)

    def treduce(x):
        a(f"v_permlane32_swap_b32 v{x}, v{x+1}")
        a(f"v_permlane32_swap_b32 v{x+2}, v{x+3}")
        a(f"v_add_f32 v{x}, v{x}, v{x+1}")
        a(f"v_add_f32 v{x+2}, v{x+2}, v{x+3}")
        a(f"v_permlane16_swap_b32 v{x}, v{x+2}")
        a(f"v_add_f32 v{x}, v{x}, v{x+2}")
        a(f"v_add_f32_dpp v{x}, v{x}, v{x} row_ror:8 {FULL}")

    def slab_perm(raw, out):
        for kap in range(4):
            sel = "s30" if kap % 2 == 0 else "s31"
            for pr in range(4):
                lo = raw + 4 * pr + (kap >> 1)
                a(f"v_perm_b32 v{out+kap*4+pr}, v{lo+2}, v{lo}, {sel}")

    def mfma4(ops):
        for kap in range(4):
            a(f"v_mfma_f32_16x16x32_bf16 v[{DO+4*kap}:{DO+4*kap+3}], v[{AO}:{AO+3}], v[{ops+4*kap}:{ops+4*kap+3}], 0")

    def slab_mfma(p0, p1, ops):
        a(f"v_cndmask_b32 v{AO}, v{p0}, 0, s[92:93]")
        a(f"v_cndmask_b32 v{AO+1}, v{p1}, 0, s[92:93]")
        a(f"v_cndmask_b32 v{AO+2}, 0, v{p0}, s[92:93]")
        a(f"v_cndmask_b32 v{AO+3}, 0, v{p1}, s[92:93]")
        mfma4(ops)

    def glu_loads():
        n = new()
        a(f"s_mul_i32 s24, s5, {16*3584}")
        a("s_movk_i32 s25, 3584")
        a("s_cmp_eq_u32 s32, 3")
        a(f"s_cbranch_scc0 L_fullg{n}")
        half_exec()
        a(f"L_fullg{n}:")
        for e in range(4):
            for beta in range(2):
                r = RAW2 + (beta * 4 + e) * 2
                a(f"buffer_load_dwordx2 v[{r}:{r+1}], v20, s[{16-4*beta}:{19-4*beta}], s24 offen {ntw}")
            if e < 3:
                a("s_add_u32 s24, s24, s25")
        a("s_mov_b64 exec, -1")

    a("L_helper:")
    a("v_lshl_add_u32 v1, v2, 3, v9")
    a("s_lshl_b32 s26, s5, 5")
    a("v_add_u32 v1, s26, v1")
    a("global_load_dwordx2 v[26:27], v1, s[36:37]")
    a(f"v_mul_u32_u24 v20, {4*3584}, v2")
    a("v_add_u32 v20, v20, v4")
    a("s_mul_i32 s26, s4, 448")
    a("s_lshl_b32 s27, s32, 7")
    a("s_add_u32 s26, s26, s27")
    a("v_add_u32 v20, s26, v20")
    a("s_mov_b32 s16, s48")
    a("s_mov_b32 s17, s49")
    a(f"s_mov_b32 s18, {512*3584}")
    a("s_mov_b32 s19, 0x20000")
    a("s_mov_b32 s12, s50")
    a("s_mov_b32 s13, s51")
    a(f"s_mov_b32 s14, {512*3584}")
    if cpf:
        a("s_cmp_eq_u32 s32, 3")
        a("s_cbranch_scc0 L_nocpf")
        a("s_getpc_b64 s[96:97]")
        a("L_pc:")
        a(f"s_sub_u32 s96, s96, L_pc-{KN}")
        a("s_subb_u32 s97, s97, 0")
        a("s_min_u32 s26, s5, (L_end-" + KN + ")/1024-1")
        a("s_lshl_b32 s26, s26, 10")
        a("v_lshl_add_u32 v1, v0, 4, s26")
        a("global_load_dwordx4 v[40:43], v1, s[96:97]")
        a("L_nocpf:")
    glu_loads()
    later = 9
    a("s_lshr_b32 s6, s5, 4")
    a(f"s_mul_i32 s34, s4, {GSTR}")
    a("s_mov_b32 s29, 0x40000")
    a("s_mov_b32 s30, 0x05040100")
    a("s_mov_b32 s31, 0x07060302")
    a("s_mov_b32 s89, 0x3fb8aa3b")
    a("s_mov_b32 s90, 0xffff0000")
    a("s_mov_b32 s91, 0xfffff000")
    a("s_mov_b32 s92, 0xff00ff00")
    a("s_mov_b32 s93, 0xff00ff00")
    a("s_mov_b32 s23, 0x20000")
    a("v_lshl_add_u32 v23, v2, 12, v4")
    a("s_lshl_b32 s27, s32, 8")
    a("v_add_u32 v23, s27, v23")
    a("v_mov_b32 v8, 0")
    a("s_lshl_b32 s26, s32, 9")
    a("v_lshlrev_b32 v9, 4, v0")
    a("v_add_u32 v5, s26, v9")
    a(f"s_waitcnt vmcnt({later+2})")
    slab_perm(RAW, OPS)
    a(f"s_waitcnt vmcnt({later})")
    mfma4(OPS)
    a(f"v_add_u32 v7, {TAGC}, v7")
    a("v_and_b32 v6, 0xfff, v7")
    a("s_mov_b32 exec_hi, 0")
    for kap in range(4):
        a(f"v_and_or_b32 v{16+kap}, v{DO+4*kap}, s91, v6")
    a(f"ds_write_b128 v5, v[16:19] offset:{L_O}")
    a("s_mov_b64 exec, -1")
    stamp(1)
    a("s_cmp_eq_u32 s32, 0")
    a("s_cbranch_scc0 L_hb1")
    a("v_lshlrev_b32 v1, 2, v0")
    a(f"ds_write_b32 v1, v8 offset:{L_CS}")
    a("s_getreg_b32 s33, hwreg(HW_REG_XCC_ID, 0, 4)")
    a("s_add_u32 s33, s33, 1")
    a("v_add_u32 v25, s33, v7")
    a("v_and_b32 v24, 0xfff, v25")
    a("v_and_b32 v9, 0x1ff, v9")
    a("v_bfe_u32 v2, v0, 4, 1")
    a("v_lshlrev_b32 v21, 8, v2")
    a("v_and_b32 v2, 1, v0")
    a("v_lshl_add_u32 v21, v2, 7, v21")
    a("v_bfe_u32 v2, v0, 1, 3")
    a("v_lshl_add_u32 v21, v2, 4, v21")
    a("s_lshl_b32 s26, s5, 9")
    a("s_add_u32 s26, s26, s34")
    a(f"s_add_u32 s26, s26, {QP}")
    a("v_add_u32 v21, s26, v21")
    a("v_bfe_u32 v2, v0, 2, 2")
    a("v_lshlrev_b32 v14, 10, v2")
    a("v_lshrrev_b32 v2, 5, v0")
    a("v_lshl_add_u32 v14, v2, 9, v14")
    a("v_bfe_u32 v2, v0, 4, 1")
    a("v_lshl_add_u32 v14, v2, 6, v14")
    a("v_and_b32 v2, 3, v0")
    a("v_lshl_add_u32 v14, v2, 4, v14")
    a("s_lshl_b32 s26, s6, 8")
    a("s_add_u32 s26, s26, s34")
    a(f"s_add_u32 s26, s26, {QP+4096}")
    a("v_add_u32 v14, s26, v14")
    a("v_add_u32 v15, 0x2000, v14")
    regs = list(range(GA, GA + 16))
    poll(lambda: [a(f"ds_read_b128 v[{GA+4*w}:{GA+4*w+3}], v9 offset:{L_O+w*512}") for w in range(4)],
         lambda: tagcheck(regs, "0xfff", 6, wait="lgkmcnt(0)"))
    strip(regs)
    sum4(GA)
    a("s_mov_b32 exec_hi, 0")
    for i in range(4):
        a(f"v_and_or_b32 v{16+i}, v{GA+i}, s91, v24")
    a("global_store_dwordx4 v21, v[16:19], s[60:61]")
    a("s_mov_b64 exec, -1")
    stamp(2)
    regs = list(range(GA, GA + 32))

    def qloads():
        for half in range(2):
            for kq in range(4):
                r = GA + (half * 4 + kq) * 4
                a(f"global_load_dwordx4 v[{r}:{r+3}], v{14 + (kq >> 1)}, s[60:61] offset:{(kq & 1)*4096 - 4096 + half*128} sc1")
    if qdelay:
        a(f"s_sleep {qdelay}")
    a(f"s_movk_i32 s27, {0 if force_slow else fbk}")
    a("s_mov_b32 s94, 2")
    a("L_qf:")
    a("s_sub_u32 s27, s27, 1")
    a("s_cbranch_scc1 L_qslow")
    qloads()
    tagcheck(regs, "0xfff", 25)
    a("s_cbranch_vccz L_qok")
    a(f"s_sleep {qsleep}")
    a("s_branch L_qf")

    def qslow():
        a("L_qslow:")
        a("s_mov_b32 s94, 1")
        a("s_mov_b32 exec_hi, 0")
        for i in range(4):
            a(f"v_and_or_b32 v{16+i}, v{16+i}, s91, v6")
        a("global_store_dwordx4 v21, v[16:19], s[60:61] sc1")
        a("s_mov_b64 exec, -1")

        def either():
            a("s_waitcnt vmcnt(0)")
            a("v_mov_b32 v3, 0")
            for r in range(GA, GA + 32):
                a(f"v_sub_u32 v1, v{r}, v6")
                a("v_and_b32 v1, 0xfff, v1")
                a("v_subrev_u32 v2, s33, v1")
                a("v_mul_i32_i24 v1, v1, v2")
                a("v_or_b32 v3, v3, v1")
            a("v_cmp_ne_u32 vcc, 0, v3")
        poll(qloads, either, sleep=4)
        a("s_branch L_qok")
    cold.append(qslow)
    a("L_qok:")
    strip(regs)
    sum4(GA)
    sum4(GA + 16)
    a(f"v_cvt_pk_bf16_f32 v28, v{GA}, v{GA+1}")
    a(f"v_cvt_pk_bf16_f32 v29, v{GA+2}, v{GA+3}")
    a(f"v_cvt_pk_bf16_f32 v30, v{GA+16}, v{GA+17}")
    a(f"v_cvt_pk_bf16_f32 v31, v{GA+18}, v{GA+19}")
    a("v_lshlrev_b32 v3, 4, v0")
    a(f"ds_write_b128 v3, v[28:31] offset:{L_Q}")
    a("v_mov_b32 v24, s94")
    a("v_add_u32 v25, 16, v7")
    a("v_and_b32 v25, 0xfff, v25")
    a(f"ds_write_b64 v8, v[24:25] offset:{L_FL}")
    stamp(3)
    a("L_hb1:")
    a("s_waitcnt lgkmcnt(0)")
    a("s_barrier")
    if prio:
        a("s_setprio 0")
    if abl == 1:
        a("s_branch L_hdone")

    a(f"ds_read_b32 v1, v8 offset:{L_FL}")
    a("v_bfe_u32 v2, v0, 1, 3")
    a("v_lshlrev_b32 v24, 12, v2")
    a("v_lshrrev_b32 v2, 4, v0")
    a("v_lshl_add_u32 v24, v2, 5, v24")
    a("v_and_b32 v2, 1, v0")
    a("v_lshl_add_u32 v24, v2, 4, v24")
    a("s_lshl_b32 s26, s32, 15")
    a("s_lshl_b32 s27, s5, 7")
    a("s_add_u32 s26, s26, s27")
    a("s_add_u32 s26, s26, s34")
    a("v_add_u32 v24, s26, v24")
    a("v_lshrrev_b32 v3, 5, v0")
    a("v_bfe_u32 v2, v0, 2, 2")
    a("v_lshl_add_u32 v3, v3, 2, v2")
    a("v_lshlrev_b32 v3, 12, v3")
    a("v_bfe_u32 v2, v0, 4, 1")
    a("v_lshl_add_u32 v3, v2, 6, v3")
    a("v_and_b32 v2, 3, v0")
    a("v_lshl_add_u32 v3, v2, 4, v3")
    a("v_add_u32 v15, s26, v3")
    a("s_waitcnt vmcnt(0) lgkmcnt(0)")
    a("v_readfirstlane_b32 s94, v1")
    slab_perm(RAW2, OPS2)
    slab_mfma(26, 27, OPS2)
    for kap in range(4):
        a(f"v_and_or_b32 v{32+kap}, v{DO+4*kap}, s91, v6")
    pub(lambda fl: a(f"global_store_dwordx4 v24, v[32:35], s[60:61] {fl}"))
    for i in range(16):
        a(f"v_mov_b32 v{RAW2+i}, 0")
    a("s_mov_b32 s16, s44")
    a("s_mov_b32 s17, s45")
    a("s_mov_b32 s18, 0x400000")
    a("s_mov_b32 s20, s52")
    a("s_mov_b32 s21, s53")
    a(f"s_mov_b32 s22, {1792*1024}")
    a("s_lshl_b32 s26, s5, 12")
    a("s_add_u32 s26, s26, s34")
    a("v_lshl_add_u32 v21, v0, 4, s26")
    a("s_lshl_b32 s26, s5, 11")
    a("s_add_u32 s26, s26, s34")
    a(f"s_add_u32 s26, s26, {IN1}")
    a("v_lshl_add_u32 v14, v0, 4, s26")
    a("v_and_b32 v1, 7, v0")
    a("v_lshlrev_b32 v22, 4, v1")
    a("v_bfe_u32 v1, v0, 4, 1")
    a("v_lshl_add_u32 v22, v1, 3, v22")
    a("v_lshrrev_b32 v1, 5, v0")
    a("v_lshl_add_u32 v22, v1, 2, v22")
    a("v_add_u32 v53, 16, v7")
    a("v_and_b32 v52, 0xfff, v53")
    a("s_cmp_eq_u32 s32, 0")
    a("s_cbranch_scc1 L_h0mid")
    a("s_cmp_eq_u32 s32, 1")
    a("s_cbranch_scc0 L_late")

    a("v_lshrrev_b32 v1, 5, v0")
    a("v_lshlrev_b32 v1, 4, v1")
    a("v_and_b32 v2, 15, v0")
    a("v_add_u32 v1, v1, v2")
    a("v_lshlrev_b32 v1, 5, v1")
    a("v_bfe_u32 v2, v0, 4, 1")
    a("v_lshl_add_u32 v2, v2, 10, v1")
    a("global_load_dwordx4 v[56:59], v2, s[36:37]")
    a("global_load_dwordx4 v[60:63], v2, s[36:37] offset:16")
    a("global_load_dwordx4 v[40:43], v1, s[54:55]")
    a("global_load_dwordx4 v[44:47], v1, s[54:55] offset:16")
    a("v_mov_b32 v10, 0")
    a("s_waitcnt vmcnt(0)")
    for i in range(8):
        a(f"v_lshlrev_b32 v48, 16, v{56+i}")
        a(f"v_and_b32 v49, s90, v{56+i}")
        a(f"v_lshlrev_b32 v50, 16, v{40+i}")
        a(f"v_and_b32 v51, s90, v{40+i}")
        a("v_mul_f32 v48, v48, v50")
        a("v_mul_f32 v49, v49, v51")
        a("v_cvt_pk_bf16_f32 v48, v48, v49")
        a("v_and_b32 v49, s90, v48")
        a("v_lshlrev_b32 v48, 16, v48")
        a("v_add_f32 v10, v10, v48")
        a("v_add_f32 v10, v10, v49")
    for rr in (8, 4, 2, 1):
        a(f"v_add_f32_dpp v10, v10, v10 row_ror:{rr} {FULL}")
    a("v_mov_b32 v48, v10")
    a("v_permlane32_swap_b32 v10, v48")
    a("v_add_f32 v10, v10, v48")
    a("v_cvt_pk_bf16_f32 v10, v10, v10")
    a("v_and_b32 v10, s90, v10")
    a("v_mul_f32 v10, s89, v10")
    a("v_exp_f32 v10, -v10")
    a("v_add_f32 v10, 1.0, v10")
    a("v_rcp_f32 v10, v10")
    a("v_cvt_pk_bf16_f32 v10, v10, v10")
    a("v_and_b32 v10, s90, v10")
    a("v_sub_f32 v11, 1.0, v10")
    a("v_cvt_pk_bf16_f32 v11, v11, v11")
    a("v_and_b32 v11, s90, v11")
    a("v_lshlrev_b32 v1, 3, v0")
    a(f"ds_write_b64 v1, v[10:11] offset:{L_GT}")
    a("s_branch L_hrdy")

    a("L_h0mid:")
    lds_spin(L_CS, 4, "v2", "v8", sleep=4)
    a("v_and_b32 v1, 3, v0")
    a("v_lshlrev_b32 v2, 4, v1")
    a(f"ds_read_b128 v[36:39], v2 offset:{L_M}")
    a(f"ds_read_b128 v[28:31], v2 offset:{L_L}")
    a("s_lshl_b32 s26, s5, 6")
    a("s_add_u32 s26, s26, s34")
    a(f"s_add_u32 s26, s26, {STAT}")
    a("v_add_u32 v1, s26, v2")
    a("v_mov_b32 v42, v7")
    a("v_mov_b32 v43, v7")
    a("s_waitcnt lgkmcnt(0)")
    a("v_max3_f32 v40, v36, v37, v38")
    a("v_max_f32 v40, v40, v39")
    for i in range(4):
        a(f"v_sub_f32 v{36+i}, v{36+i}, v40")
    for i in range(4):
        a(f"v_exp_f32 v{36+i}, v{36+i}")
    a("v_mul_f32 v41, v36, v28")
    for i in range(1, 4):
        a(f"v_fmac_f32 v41, v{36+i}, v{28+i}")
    a("s_mov_b64 exec, 0xf")
    pub(lambda fl: a(f"global_store_dwordx4 v1, v[40:43], s[60:61] {fl}"))
    a("s_mov_b64 exec, -1")
    stamp(4)
    a("v_bfe_u32 v1, v0, 2, 1")
    a("v_lshlrev_b32 v1, 4, v1")
    a("v_bfe_u32 v2, v0, 3, 1")
    a("v_lshl_add_u32 v1, v2, 2, v1")
    a("v_and_b32 v2, 3, v0")
    a("v_add_u32 v1, v1, v2")
    a("s_lshr_b32 s27, s5, 3")
    a("s_lshl_b32 s27, s27, 4")
    a("s_add_u32 s26, s34, s27")
    a(f"s_add_u32 s26, s26, {STAT}")
    a("v_lshl_add_u32 v25, v1, 6, s26")
    a("v_lshrrev_b32 v1, 5, v0")
    a("v_lshlrev_b32 v1, 1, v1")
    a("v_bfe_u32 v2, v0, 3, 1")
    a("v_add_u32 v1, v1, v2")
    a("v_and_b32 v2, 3, v0")
    a("v_lshl_add_u32 v1, v1, 2, v2")
    a("v_lshlrev_b32 v9, 7, v1")
    a("v_bfe_u32 v1, v0, 2, 1")
    a("v_lshl_add_u32 v9, v1, 5, v9")
    a("v_bfe_u32 v1, v0, 4, 1")
    a("v_lshl_add_u32 v9, v1, 4, v9")
    a("s_lshl_b32 s26, s5, 12")
    a("s_add_u32 s26, s26, s34")
    a("v_add_u32 v9, s26, v9")
    a("v_mov_b32 v46, 0")
    a("v_mov_b32 v47, 0")
    a("s_cmp_ge_u32 s5, 28")
    a("s_cbranch_scc1 L_noglu")
    regs = list(range(GA, GA + 16))
    poll(lambda: gl([(GA + 4 * t, (t & 1) * 2048 + (t >> 1) * 64) for t in range(4)], 9),
         lambda: tagcheck(regs, "0xfff", 7), sleep=stsleep)
    strip(regs)
    G, U = GA, GA + 8
    for m in (G, U):
        for pr in (0, 2):
            pkadd(m + pr, m + 4 + pr)
    for ctl in XOR3:
        for m in (G, U):
            for i in range(4):
                a(f"v_add_f32_dpp v{m+i}, v{m+i}, v{m+i} {ctl} {FULL}")
    for m in (G, U):
        for i in range(4):
            a(f"v_mov_b32 v{m+4+i}, v{m+i}")
    for m in (G, U):
        for i in range(4):
            a(f"v_permlane32_swap_b32 v{m+i}, v{m+4+i}")
    for m in (G, U):
        for i in range(4):
            a(f"v_add_f32 v{m+i}, v{m+i}, v{m+4+i}")

    def rnd4(v):
        a(f"v_cvt_pk_bf16_f32 v28, v{v}, v{v+1}")
        a(f"v_cvt_pk_bf16_f32 v29, v{v+2}, v{v+3}")
        a(f"v_lshlrev_b32 v{v}, 16, v28")
        a(f"v_and_b32 v{v+1}, s90, v28")
        a(f"v_lshlrev_b32 v{v+2}, 16, v29")
        a(f"v_and_b32 v{v+3}, s90, v29")
    rnd4(G)
    rnd4(U)
    for i in range(4):
        a(f"v_mul_f32 v{G+i}, s89, v{G+i}")
    for i in range(4):
        a(f"v_exp_f32 v{G+i}, -v{G+i}")
    for i in range(4):
        a(f"v_add_f32 v{G+i}, 1.0, v{G+i}")
    for i in range(4):
        a(f"v_rcp_f32 v{G+i}, v{G+i}")
    rnd4(G)
    for i in range(4):
        a(f"v_mul_f32 v{G+i}, v{G+i}, v{U+i}")
    a("s_mov_b32 exec_hi, 0")
    a(f"v_cvt_pk_bf16_f32 v46, v{G}, v{G+1}")
    a(f"v_cvt_pk_bf16_f32 v47, v{G+2}, v{G+3}")
    a("s_mov_b64 exec, -1")
    a("L_noglu:")
    a("v_mov_b32 v2, 1")
    a(f"ds_write_b32 v8, v2 offset:{L_GG}")
    lds_spin(L_TR, 1, "v2", "v8", sleep=4, cmp="ge")
    poll(lambda: gl([(36, 0), (48, 512)], 25),
         lambda: [a("s_waitcnt vmcnt(0)"), a("v_bitop3_b32 v1, v38, v50, v7 bitop3:0x7e"), a("v_cmp_ne_u32 vcc, 0, v1")], sleep=stsleep)
    a("v_max_f32 v2, v36, v48")
    for ctl in XOR3:
        a(f"v_max_f32_dpp v2, v2, v2 {ctl} {FULL}")
    a("v_sub_f32 v44, v36, v2")
    a("v_sub_f32 v45, v48, v2")
    a("v_exp_f32 v44, v44")
    a("v_exp_f32 v45, v45")
    a("v_mul_f32 v2, v44, v37")
    a("v_fmac_f32 v2, v45, v49")
    for ctl in XOR3:
        a(f"v_add_f32_dpp v2, v2, v2 {ctl} {FULL}")
    a("v_rcp_f32 v2, v2")
    a("v_lshlrev_b32 v1, 4, v0")
    a("v_mul_f32 v44, v44, v2")
    a("v_mul_f32 v45, v45, v2")
    a(f"ds_write_b128 v1, v[44:47] offset:{L_W}")
    stamp(5)
    a("L_hrdy:")
    a("s_mov_b64 exec, 1")
    a("v_mov_b32 v2, 1")
    a(f"ds_add_u32 v8, v2 offset:{L_HR}")
    a("s_mov_b64 exec, -1")
    a("L_late:")
    if abl == 3:
        a("s_branch L_hdone")

    a("s_mul_i32 s25, s4, 224")
    a("s_lshl_b32 s26, s5, 3")
    a("s_add_u32 s25, s25, s26")
    a("s_lshl_b32 s25, s25, 10")
    a("s_lshl_b32 s24, s4, 5")
    a("s_add_u32 s24, s24, s5")
    a("s_lshl_b32 s24, s24, 14")
    a("s_lshl_b32 s26, s5, 10")
    a(f"s_add_u32 s26, s26, {IN3}")
    a("v_lshl_add_u32 v25, v0, 4, s26")
    a("s_lshl_b32 s27, s4, 7")
    a("s_add_u32 s26, s26, s27")
    a("v_add_u32 v24, s26, v22")
    a("v_and_b32 v1, 63, v22")
    a("v_lshrrev_b32 v1, 1, v1")
    a("v_bfe_u32 v2, v0, 2, 1")
    a("v_lshl_add_u32 v1, v2, 10, v1")
    a("s_lshl_b32 s26, s5, 5")
    a("v_add_u32 v9, s26, v1")
    lds_spin(L_HR, 2, "v2", "v8", sleep=4)
    a("v_lshlrev_b32 v1, 4, v0")
    a("v_lshlrev_b32 v2, 3, v0")
    a(f"ds_read_b128 v[44:47], v1 offset:{L_W}")
    a(f"ds_read_b64 v[10:11], v2 offset:{L_GT}")
    lds_spin(L_TR, 2, "v2", "v8", sleep=2)
    a("s_cmp_ge_u32 s5, 28")
    a("s_cbranch_scc1 L_nowd")
    a("s_mov_b32 exec_hi, 0")
    for beta in range(2):
        for e in range(4):
            r = RAW2 + (beta * 4 + e) * 2
            a(f"buffer_load_dwordx2 v[{r}:{r+1}], v23, s[20:23], s25 offen offset:{e*1024+beta*128} {ntw}")
    a("s_mov_b64 exec, -1")
    a("L_nowd:")
    for beta in range(2):
        for e in range(4):
            r = RAW3 + (beta * 4 + e) * 2
            a(f"buffer_load_dwordx2 v[{r}:{r+1}], v23, s[16:19], s24 offen offset:{e*1024+beta*128} {ntw}")
    nw = 0
    if warm:
        a("s_lshl_b32 s26, s32, 10")
        a("v_add_u32 v1, s26, v21")
        a("global_load_dwordx4 v[64:67], v1, s[60:61] sc1")
        a("s_and_b32 s26, s26, 0x400")
        a("v_add_u32 v1, s26, v14")
        a("global_load_dwordx4 v[68:71], v1, s[60:61] sc1")
        nw = 2
    a("v_mov_b32 v12, v44")
    a("v_mov_b32 v13, v45")
    a(f"s_waitcnt vmcnt({8+nw})")
    slab_perm(RAW2, OPS2)
    slab_mfma(46, 47, OPS2)
    for kap in range(4):
        a(f"v_mul_f32 v{16+kap}, v11, v{DO+4*kap}")
    a(f"s_waitcnt vmcnt({nw})")
    slab_perm(RAW3, OPS3)
    stamp(6)
    if abl == 4:
        a("s_branch L_hdone")
    lds_spin(L_CO, 4, "v2", "v8", sleep=1)
    tstamp(1)
    regs = list(range(64, 72))
    poll(lambda: gl([(64, 0), (68, 1024)], 14), lambda: tagcheck(regs, "0xfff", 53), sleep=p1sleep)
    tstamp(2)
    strip(regs)
    for pr in range(2):
        a(f"v_pk_mul_f32 v[{64+2*pr}:{65+2*pr}], v[{64+2*pr}:{65+2*pr}], v[12:13] op_sel_hi:[1,0]")
    for pr in range(2):
        a(f"v_pk_fma_f32 v[{64+2*pr}:{65+2*pr}], v[{68+2*pr}:{69+2*pr}], v[12:13], v[{64+2*pr}:{65+2*pr}] op_sel:[0,1,0] op_sel_hi:[1,1,1]")
    for ctl in XOR3:
        for i in range(4):
            a(f"v_add_f32_dpp v{64+i}, v{64+i}, v{64+i} {ctl} {FULL}")
    a("v_cvt_pk_bf16_f32 v28, v64, v65")
    a("v_cvt_pk_bf16_f32 v29, v66, v67")
    slab_mfma(28, 29, OPS3)
    for kap in range(4):
        a(f"v_fma_f32 v{16+kap}, v10, v{DO+4*kap}, v{16+kap}")
    for kap in range(4):
        a(f"v_and_or_b32 v{16+kap}, v{16+kap}, s91, v52")
    pub(lambda fl: a(f"global_store_dwordx4 v15, v[16:19], s[60:61] {fl}"))
    stamp(7)
    a("s_cmp_lg_u32 s32, 0")
    a("s_cbranch_scc1 L_hdone")
    regs = list(range(GA, GA + 16))
    poll(lambda: gl([(GA + 4 * t, t * 1024) for t in range(4)], 21), lambda: tagcheck(regs, "0xfff", 53))
    strip(regs)
    sum4(GA)
    treduce(GA)
    tstamp(3)
    a(f"v_and_or_b32 v{GA}, v{GA}, s91, v6")
    half_exec()
    a(f"global_store_dword v24, v{GA}, s[60:61] sc1")
    a("s_mov_b64 exec, -1")
    tstamp(4)
    a("s_and_b32 s26, s5, 7")
    a("s_cmp_lg_u32 s26, s4")
    a("s_cbranch_scc1 L_hdone")
    if delay3:
        a(f"s_sleep {delay3}")
    regs = list(range(GA, GA + 4))
    if atom:
        a("v_mov_b32 v32, 0")
        a("v_mov_b32 v33, 0")
        poll(lambda: [a(f"global_atomic_add_x2 v[{GA+2*t}:{GA+2*t+1}], v25, v[32:33], s[60:61] offset:{t*8} sc0 sc1") for t in range(2)],
             lambda: tagcheck(regs, "0xfff", 7))
    else:
        poll(lambda: gl([(GA, 0)], 25), lambda: tagcheck(regs, "0xfff", 7))
    tstamp(5)
    strip(regs)
    treduce(GA)
    a(f"v_cvt_pk_bf16_f32 v{GA}, v{GA}, v{GA}")
    half_exec()
    a(f"global_store_short v9, v{GA}, s[56:57]")
    a("s_cmp_lg_u32 s2, 0")
    a("s_cbranch_scc1 L_noep")
    a("s_mov_b64 exec, 1")
    a(f"v_mov_b32 v1, {EP}")
    a("global_store_dword v1, v7, s[60:61] sc1")
    a("L_noep:")
    stamp(8)
    a("L_hdone:")
    stamp_out()
    a("s_endpgm")
    i = 0
    while i < len(cold):
        cold[i]()
        i += 1
    a("L_abort:")
    a("s_mov_b64 exec, 1")
    a("v_mov_b32 v1, 8")
    a("v_mov_b32 v2, 0xdead")
    a("global_store_dword v1, v2, s[58:59]")
    a("L_end:")
    a("s_endpgm")
    a.pad()

    out = HEADER
    out += "; Generated by my own script; one persistent workgroup per CU: four waves stream K then V (paced),\n"
    out += "; four helper waves do the projections and the tagged hand-offs between workgroups.\n"
    out += f"; @launch grid=(256,1,1) block=(512,1,1) lds={LDS_BYTES}\n"
    out += '.amdgcn_target "amdgcn-amd-amdhsa--gfx950"\n.text\n'
    out += f".globl {KN}\n.p2align 8\n.type {KN},@function\n"
    out += a.text()
    out += '.section .rodata,"a"\n.p2align 6\n'
    out += f".amdhsa_kernel {KN}\n"
    out += "  .amdhsa_next_free_vgpr 256\n  .amdhsa_next_free_sgpr 102\n  .amdhsa_accum_offset 256\n"
    out += "  .amdhsa_group_segment_fixed_size 0\n  .amdhsa_kernarg_size 104\n  .amdhsa_user_sgpr_count 2\n"
    out += "  .amdhsa_user_sgpr_kernarg_segment_ptr 1\n  .amdhsa_system_sgpr_workgroup_id_x 1\n.end_amdhsa_kernel\n"
    return out


if __name__ == "__main__":
    kw = eval("dict(" + (sys.argv[2] if len(sys.argv) > 2 else "") + ")")
    open(sys.argv[1], "w").write(gen(**kw))
```
